```python
import torch

def _softmax(x, axis=-1):
    return torch.softmax(x, dim=axis)

def _gelu(x):
    return torch.nn.functional.gelu(x, approximate='tanh')

def _silu(x):
    return torch.nn.functional.silu(x)

def _sigmoid(x):
    return torch.sigmoid(x)

def _layernorm(x, axis=-1, eps=1e-05):
    m = x.mean(dim=axis, keepdim=True)
    v = x.var(dim=axis, keepdim=True, unbiased=False)
    return (x - m) / torch.sqrt(v + eps)

def _scatter_add(tgt, idx, src, axis=0):
    return tgt.clone().index_add_(axis, idx, src)

def _segment_sum(src, seg, n):
    out = torch.zeros((n,) + src.shape[1:], dtype=src.dtype)
    return out.index_add_(0, seg, src)

def _pad(x, pw):
    flat = tuple((v for pair in reversed(pw) for v in pair))
    return torch.nn.functional.pad(x, flat)
kernel_name = 'standalone__varlen_attn_packed__ragged'

def setup_inputs():

    _w = lambda a: (lambda t: t.to(torch.bfloat16) if t.is_floating_point() else t)(torch.as_tensor(a))
    cu = torch.tensor([0, 205, 520, 906, 1211, 1583, 1912, 2114, 2429, 2893, 2977, 3099, 3593, 3692, 4133, 4346, 4464], dtype=torch.int64)
    T, H, D = (int(cu[-1]), 16, 128)
    return {'q': _w((lambda *s: torch.randn(*s, dtype=torch.bfloat16) * 0.8)(T, H, D)), 'k': _w((lambda *s: torch.randn(*s, dtype=torch.bfloat16) * 0.8)(T, H, D)), 'v': _w((lambda *s: torch.randn(*s, dtype=torch.bfloat16) * 0.05)(T, H, D)), 'cu': _w(cu)}

def reference(q, k, v, cu):
    T, H, D = q.shape
    out = torch.zeros_like(q)
    scale = D ** (-0.5)
    outs = []
    for i in range(len(cu) - 1):
        s, e = (int(cu[i]), int(cu[i + 1]))
        qi, ki, vi = (q[s:e].clone(), k[s:e].clone(), v[s:e].clone())
        p = _softmax(torch.einsum('qhd,khd->hqk', qi, ki) * scale, axis=-1)
        outs.append(torch.einsum('hqk,khd->qhd', p, vi))
    return torch.concatenate(outs, axis=0)
```

```python
import re


class Asm:
    def __init__(self):
        self.lines = []

    def __call__(self, s):
        for ln in s.strip("\n").split("\n"):
            ln = ln.strip()
            if ln:
                self.lines.append(ln)

    def label(self, name):
        self.lines.append(name + ":")

    def extend(self, seq):
        for s in seq:
            self(s)

    def text(self):
        out = []
        for ln in self.lines:
            if ln.endswith(":") or ln.startswith("."):
                out.append(ln)
            else:
                out.append("    " + ln)
        return "\n".join(out) + "\n"


def v(a, n=1):
    return f"v{a}" if n == 1 else f"v[{a}:{a + n - 1}]"


def s(a, n=1):
    return f"s{a}" if n == 1 else f"s[{a}:{a + n - 1}]"


_REG = re.compile(r"\b([vsa])(?:(\d+)|\[(\d+):(\d+)\])")
TRANS = ("v_exp_f32", "v_log_f32", "v_rcp_f32", "v_rsq_f32", "v_sqrt_f32")


def _regs(op):
    out = set()
    for m in _REG.finditer(op):
        k = m.group(1)
        if m.group(2) is not None:
            out.add((k, int(m.group(2))))
        else:
            for i in range(int(m.group(3)), int(m.group(4)) + 1):
                out.add((k, i))
    if re.search(r"\bvcc\b", op):
        out.add(("s", "vcc"))
    if re.search(r"\bm0\b", op):
        out.add(("s", "m0"))
    if re.search(r"\bexec\b", op):
        out.add(("s", "exec"))
    return out


class Ins:
    def __init__(self, text):
        self.text = text
        t = text.split(";")[0].strip()
        parts = t.split(None, 1)
        self.op = parts[0]
        ops = [o.strip() for o in parts[1].split(",")] if len(parts) > 1 else []
        self.ops = ops
        op = self.op
        self.is_mfma = op.startswith("v_mfma")
        self.is_valu = op.startswith("v_") and not self.is_mfma
        self.is_trans = any(op.startswith(x) for x in TRANS)
        self.is_ds = op.startswith("ds_")
        self.is_vmem = op.startswith("buffer_") or op.startswith("global_")
        self.is_salu = op.startswith("s_")
        self.w, self.r = set(), set()
        self.srcC = set()
        self.srcAB = set()
        if self.is_mfma:
            self.w = _regs(ops[0])
            self.srcAB = _regs(ops[1]) | _regs(ops[2])
            self.srcC = _regs(ops[3])
            self.r = self.srcAB | self.srcC
            self.passes = 8 if "32x32" in op else 4
        elif self.is_valu:
            if op.startswith("v_permlane") and "swap" in op:
                self.w = _regs(ops[0]) | _regs(ops[1])
                self.r = set(self.w)
            elif op.startswith("v_nop"):
                pass
            else:
                self.w = _regs(ops[0])
                for o in ops[1:]:
                    self.r |= _regs(o)
                if op.startswith("v_fmac") or op.startswith("v_writelane"):
                    self.r |= self.w
                if op.startswith("v_cmpx"):
                    self.w.add(("s", "exec"))
        elif self.is_ds:
            if op.startswith("ds_read") or op.startswith("ds_bpermute"):
                self.w = _regs(ops[0])
                for o in ops[1:]:
                    self.r |= _regs(o)
            else:
                for o in ops:
                    self.r |= _regs(o)
        elif self.is_vmem:
            lds = re.search(r"\blds\b", t) is not None
            self.lds_dma = lds
            if "load" in op and not lds:
                self.w = _regs(ops[0])
                for o in ops[1:]:
                    self.r |= _regs(o)
            else:
                for o in ops:
                    self.r |= _regs(o)
            if lds:
                self.r.add(("s", "m0"))
            self.wide_store = "store" in op and ("x4" in op or "x3" in op)
            self.store_data = _regs(ops[0]) if ("store" in op and op.startswith("buffer_")) else set()
        elif self.is_salu:
            if op.startswith(("s_cmp", "s_cbranch", "s_branch", "s_waitcnt", "s_barrier", "s_nop",
                              "s_endpgm", "s_setprio", "s_bitcmp")):
                for o in ops:
                    self.r |= _regs(o)
            else:
                self.w = _regs(ops[0]) if ops else set()
                for o in ops[1:]:
                    self.r |= _regs(o)
        self.states = 1
        if op == "s_nop":
            self.states = int(ops[0], 0) + 1


def required(p, c):
    need = 0
    vw = {x for x in p.w if x[0] in "va"}
    sw = {x for x in p.w if x[0] == "s"}
    if p.is_valu:
        if c.is_mfma and vw & c.r:
            need = max(need, 2)
        if p.is_trans and c.is_valu and not c.is_trans and vw & c.r:
            need = max(need, 1)
        if c.is_valu and c.op.startswith("v_permlane") and vw & c.r:
            need = max(need, 2)
        if c.op.startswith(("v_readlane", "v_readfirstlane")) and vw & c.r:
            need = max(need, 1)
        if c.is_valu and sw & c.r:
            need = max(need, 2)
        if c.is_vmem and sw & c.r:
            need = max(need, 5)
        if c.is_valu and "dpp" in c.text and vw & c.r:
            need = max(need, 2)
        if ("s", "exec") in p.w and c.is_mfma:
            need = max(need, 4)
        if "sdwa" in p.op and c.is_valu and vw & c.r:
            need = max(need, 1)
    if p.is_salu and ("s", "m0") in p.w and c.is_vmem and getattr(c, "lds_dma", False):
        need = max(need, 1)
    if p.is_mfma:
        big = p.passes == 8
        if c.is_mfma:
            if c.srcAB & p.w:
                need = max(need, 12 if big else 8)
            if c.srcC & p.w and not (c.srcC == p.w and c.passes == p.passes):
                need = max(need, 10 if big else 6)
        elif c.is_valu or c.is_ds or c.is_vmem:
            if (c.r | c.w) & p.w:
                need = max(need, 12 if big else 8)
        if c.is_valu and c.w & p.srcC:
            need = max(need, 7 if big else 3)
    if p.is_vmem and getattr(p, "wide_store", False) and c.w & p.store_data:
        need = max(need, 2 if c.is_valu else 1)
    return need


def check_path(lines, name=""):
    ins = [Ins(x) for x in lines if not x.endswith(":") and not x.startswith((".", ";"))]
    bad = []
    for i, p in enumerate(ins):
        dist = 0
        for j in range(i + 1, min(i + 24, len(ins))):
            c = ins[j]
            n = required(p, c)
            if n > dist:
                bad.append(f"[{name}] need {n} have {dist}: '{p.text}' -> '{c.text}'")
            dist += c.states
            if dist >= 20:
                break
    return bad


def check_cfg(lines):
    labels = {}
    for i, x in enumerate(lines):
        if x.endswith(":"):
            labels[x[:-1]] = i
    bad = []
    seg = []
    for x in lines:
        if x.startswith(".long") or x.startswith(".p2align"):
            continue
        seg.append(x)
        if x.startswith(("s_branch", "s_endpgm")):
            bad += check_path(seg, "fall")
            seg = []
    bad += check_path(seg, "fall")
    for i, x in enumerate(lines):
        if x.startswith(("s_branch", "s_cbranch")):
            tgt = x.split(";")[0].split()[1]
            before = []
            k = i
            while k >= 0 and len(before) < 30:
                if k != i and lines[k].startswith(("s_branch", "s_endpgm")):
                    break
                before.append(lines[k])
                k -= 1
            before.reverse()
            after = []
            k = labels[tgt]
            while k < len(lines) and len(after) < 30:
                after.append(lines[k])
                if lines[k].startswith(("s_branch", "s_endpgm")):
                    break
                k += 1
            bad += check_path(before + after, "br->" + tgt)
    return sorted(set(bad))
```

```python
import sys, math, struct, argparse
from asmlib import Asm, v, s, check_cfg

NAME = "standalone__varlen_attn_packed__ragged"
CU = [0, 205, 520, 906, 1211, 1583, 1912, 2114, 2429, 2893, 2977, 3099, 3593, 3692, 4133, 4346, 4464]
HEADER = open("cdna_kernels/%s.s.ref" % NAME).read().split("; Override")[0]


def f32(x):
    return "0x%08x" % struct.unpack("<I", struct.pack("<f", x))[0]


def make_items(order):
    items = []
    for sq in range(16):
        L = CU[sq + 1] - CU[sq]
        n = (L + 31) // 32
        for q0 in range(0, n, 4):
            items.append((n, sq, q0))
    groups = []
    for sq in range(16):
        for hs in range(2):
            groups.append([(n, q, q0, hs) for (n, q, q0) in items if q == sq])
    groups.sort(key=lambda g: -g[0][0])
    flat = [x for g in groups for x in g]
    if order == "desc":
        return flat
    if order == "mix":
        big = flat[:32]
        rest = flat[32:]
        small_first = rest[::-1]
        second = small_first[:18] + rest[:14][::-1]
        last = rest[14:len(rest) - 18]
        return big + second + last
    raise ValueError(order)


def gen(o):
    a = Asm()
    items = make_items(o.order)
    NWG = 8 * len(items)
    LD = o.ld
    LDQ = o.ldq
    ST = o.st
    O, Q, CI, S, P, KF, VF = 0, 64, 96, [112, 128], 144, 152, 184
    KA, VA, DV0, DV1, DK0, DK1 = 216, 224, 228, 229, 230, 231
    LS, TID, M = 232, 233, 234
    T = 236
    SRQ, SRK, SRV, SRO = 12, 16, 20, 24
    sDESC, sL, sN, sW, sWB, sOFF, sEND, sREDO = 28, 29, 30, 31, 32, 33, 34, 35
    sST = 36
    sQ, sPH = 40, 41
    sT = 42
    sMASK = 50
    sM0 = 82
    sC = 86
    X = 65536
    TILE = 131072

    def mfma(d, x, y, c):
        cs = c if isinstance(c, str) else v(c, 16)
        return f"v_mfma_f32_32x32x16_bf16 {v(d,16)}, {v(x,4)}, {v(y,4)}, {cs}"

    def dma(vo, srd, so, off, fl):
        return f"buffer_load_dwordx4 {v(vo)}, {s(srd,4)}, {so} offen offset:{off} {fl} lds"

    def pair_dmas(so):
        return [dma(DV0, SRV, so, 0, LD), dma(DV1, SRV, so, 1024, LD),
                dma(DK0, SRK, so, 2048, LD), dma(DK1, SRK, so, 3072, LD)]

    def kread(i, addr, stage):
        return f"ds_read_b128 {v(KF+4*i,4)}, {v(addr+i)} offset:{stage*16384}"

    def vread(dst, f, u, stage):
        ks, dt = f // 4, f % 4
        return f"ds_read_b64_tr_b16 {v(dst+4*f+2*u,2)}, {v(VA+dt)} offset:{stage*16384+u*8192+ks*1024}"

    def exp(r):
        return f"v_exp_f32 {v(r)}, {v(r)}"

    def add(r):
        return f"v_add_f32 {v(LS)}, {v(LS)}, {v(r)}"

    def cvt(d, r):
        return f"v_cvt_pk_bf16_f32 {v(d)}, {v(r)}, {v(r+1)}"

    a(f"s_cmp_ge_u32 s2, {NWG}")
    a("s_cbranch_scc1 L_end")
    a(f"s_mov_b32 {s(sREDO)}, 0")
    a(f"v_mov_b32 {v(TID)}, v0")
    a.label("L_restart")
    a("s_load_dwordx4 s[4:7], s[0:1], 0")
    a("s_load_dwordx2 s[8:9], s[0:1], 16")
    a("s_load_dwordx2 s[10:11], s[0:1], 32")
    a(f"s_getpc_b64 {s(sT,2)}")
    a.label("L_pc")
    a(f"s_lshr_b32 {s(sT+2)}, s2, 3")
    a(f"s_lshl_b32 {s(sT+2)}, {s(sT+2)}, 2")
    a(f"s_add_u32 {s(sT+2)}, {s(sT+2)}, L_table-L_pc")
    a(f"s_load_dword {s(sDESC)}, {s(sT,2)}, {s(sT+2)}")
    t = [T + i for i in range(16)]
    a(f"v_lshrrev_b32 {v(t[0])}, 6, {v(TID)}")
    a(f"v_and_b32 {v(t[1])}, 15, {v(TID)}")
    a(f"v_readfirstlane_b32 {s(sW)}, {v(t[0])}")
    a(f"v_lshrrev_b32 {v(t[2])}, 4, {v(TID)}")
    a(f"v_and_b32 {v(t[3])}, 3, {v(t[2])}")
    a(f"v_lshlrev_b32 {v(t[4])}, 2, {v(t[3])}")
    a(f"v_xor_b32 {v(t[4])}, {v(t[4])}, {v(t[1])}")
    a(f"v_lshlrev_b32 {v(t[4])}, 4, {v(t[4])}")
    a(f"v_lshl_add_u32 {v(DV0)}, {v(t[2])}, 12, {v(t[4])}")
    a(f"v_add_u32 {v(DV1)}, {65536-1024}, {v(DV0)}")
    a(f"v_xor_b32 {v(t[4])}, {v(t[2])}, {v(t[1])}")
    a(f"v_lshlrev_b32 {v(t[4])}, 4, {v(t[4])}")
    KR0, KR1 = t[8], t[9]
    a(f"v_lshl_add_u32 {v(KR0)}, {v(t[2])}, 12, {v(t[4])}")
    a(f"v_add_u32 {v(KR1)}, {65536-1024}, {v(KR0)}")
    a(f"v_add_u32 {v(DK0)}, {TILE-2048}, {v(KR0)}")
    a(f"v_add_u32 {v(DK1)}, {TILE+65536-3072}, {v(KR0)}")
    QO = t[10]
    a(f"v_xor_b32 {v(t[4])}, {v(t[3])}, {v(t[1])}")
    a(f"v_lshlrev_b32 {v(t[4])}, 4, {v(t[4])}")
    a(f"v_lshl_add_u32 {v(QO)}, {v(t[3])}, 12, {v(t[4])}")
    for p in range(1, 4):
        a(f"v_xor_b32 {v(QO+p)}, {p<<6}, {v(QO)}")
        a(f"v_add_u32 {v(QO+p)}, {p*(16384-1024)}, {v(QO+p)}")
    a(f"s_lshl_b32 {s(sWB)}, {s(sW)}, 12")
    for b in range(4):
        a(f"s_add_u32 {s(sM0+b)}, {s(sWB)}, {b*16384}")
    a("s_waitcnt lgkmcnt(0)")
    a(f"s_and_b32 {s(sT)}, {s(sDESC)}, 0x1fff")
    a(f"s_bfe_u32 {s(sL)}, {s(sDESC)}, {13 | (9 << 16)}")
    a(f"s_bfe_u32 {s(sT+1)}, {s(sDESC)}, {22 | (4 << 16)}")
    a(f"s_bfe_u32 {s(sT+2)}, {s(sDESC)}, {26 | (3 << 16)}")
    a(f"s_bfe_u32 {s(sT+3)}, {s(sDESC)}, {29 | (1 << 16)}")
    a(f"s_add_u32 {s(sT+2)}, {s(sT+2)}, s2")
    a(f"s_and_b32 {s(sT+2)}, {s(sT+2)}, 7")
    a(f"s_lshl_b32 {s(sT+2)}, {s(sT+2)}, 1")
    a(f"s_or_b32 {s(sT+2)}, {s(sT+2)}, {s(sT+3)}")
    a(f"s_lshl_b32 {s(sT)}, {s(sT)}, 12")
    a(f"s_lshl_b32 {s(sT+2)}, {s(sT+2)}, 8")
    a(f"s_add_u32 {s(sT)}, {s(sT)}, {s(sT+2)}")
    a(f"s_lshl_b32 {s(sT+2)}, {s(sL)}, 12")
    a(f"s_sub_u32 {s(sT+2)}, {s(sT+2)}, {4096-256}")
    for srd, ptr in ((SRQ, 4), (SRK, 6), (SRV, 8), (SRO, 10)):
        a(f"s_add_u32 {s(srd)}, {s(ptr)}, {s(sT)}")
        a(f"s_addc_u32 {s(srd+1)}, {s(ptr+1)}, 0")
        a(f"s_mov_b32 {s(srd+2)}, {s(sT+2)}")
        a(f"s_mov_b32 {s(srd+3)}, 0x20000")
    a(f"s_add_u32 {s(sN)}, {s(sL)}, 31")
    a(f"s_lshr_b32 {s(sN)}, {s(sN)}, 5")
    a(f"s_add_u32 {s(sT+1)}, {s(sT+1)}, {s(sW)}")
    a(f"s_lshl_b32 {s(sQ)}, {s(sT+1)}, 17")
    a(f"s_sub_u32 {s(sPH)}, 1, {s(sN)}")
    for tt in range(4):
        a(f"s_add_u32 {s(sT+4+tt)}, {s(sPH)}, {tt}")
        a(f"s_and_b32 {s(sT+4+tt)}, {s(sT+4+tt)}, 3")
        a(f"s_lshl_b32 {s(sT+4+tt)}, {s(sT+4+tt)}, 14")
    STG = sT + 4
    a(f"s_add_u32 m0, {s(STG+3)}, {s(sWB)}")
    a(f"s_add_u32 {s(sT)}, {s(sQ)}, 65536")
    for p in range(4):
        a(dma(QO + p, SRQ, s(sQ), p * 1024, LDQ))
    a(f"s_add_u32 m0, {s(sWB)}, {X}")
    a(f"s_add_u32 {s(sT+1)}, {s(sWB)}, 2048")
    for p in range(4):
        a(dma(QO + p, SRQ, s(sT), p * 1024, LDQ))
    a(f"s_add_u32 m0, {s(STG+0)}, {s(sT+1)}")
    a(f"s_mov_b32 {s(sOFF)}, {TILE}")
    a(dma(KR0, SRK, "0", 0, LD))
    a(dma(KR1, SRK, "0", 1024, LD))
    a(f"s_add_u32 m0, {s(STG+1)}, {s(sWB)}")
    a("s_nop 0")
    a.extend(pair_dmas("0"))
    a(f"s_add_u32 m0, {s(STG+2)}, {s(sWB)}")
    a("s_nop 0")
    a.extend(pair_dmas(s(sOFF)))
    a(f"v_and_b32 {v(t[0])}, 15, {v(TID)}")
    a(f"v_bfe_u32 {v(t[1])}, {v(TID)}, 5, 1")
    a(f"v_bfe_u32 {v(t[2])}, {v(TID)}, 4, 1")
    a(f"v_xor_b32 {v(t[3])}, {v(t[0])}, {v(t[1])}")
    a(f"v_lshlrev_b32 {v(t[3])}, 4, {v(t[3])}")
    a(f"v_lshrrev_b32 {v(t[4])}, 2, {v(t[0])}")
    a(f"v_and_b32 {v(t[5])}, 3, {v(TID)}")
    a(f"v_lshl_add_u32 {v(t[6])}, {v(t[4])}, 12, {v(t[3])}")
    a(f"v_lshl_add_u32 {v(t[6])}, {v(t[2])}, 10, {v(t[6])}")
    a(f"v_lshl_add_u32 {v(t[6])}, {v(t[5])}, 8, {v(t[6])}")
    a(f"v_add_u32 {v(KA)}, 2048, {v(t[6])}")
    for i in range(1, 8):
        a(f"v_xor_b32 {v(KA+i)}, {32*i}, {v(KA)}")
    a(f"v_lshlrev_b32 {v(t[6])}, 2, {v(t[4])}")
    a(f"v_lshl_add_u32 {v(t[6])}, {v(t[2])}, 1, {v(t[6])}")
    a(f"v_bfe_u32 {v(t[7])}, {v(TID)}, 1, 1")
    a(f"v_add_u32 {v(t[6])}, {v(t[6])}, {v(t[7])}")
    a(f"v_lshlrev_b32 {v(t[6])}, 4, {v(t[6])}")
    a(f"v_lshl_add_u32 {v(t[6])}, {v(t[4])}, 8, {v(t[6])}")
    a(f"v_lshl_add_u32 {v(t[6])}, {v(t[1])}, 12, {v(t[6])}")
    a(f"v_and_b32 {v(t[7])}, 1, {v(TID)}")
    a(f"v_lshl_add_u32 {v(VA)}, {v(t[7])}, 3, {v(t[6])}")
    for dt in range(1, 4):
        a(f"v_xor_b32 {v(VA+dt)}, {64*dt}, {v(VA)}")
    a(f"s_add_u32 {s(sT)}, {s(STG+3)}, {s(sWB)}")
    a(f"s_add_u32 {s(sT+1)}, {s(sWB)}, {X}")
    a(f"s_sub_u32 {s(sT+1)}, {s(sT+1)}, {s(sT)}")
    a(f"v_mul_lo_u32 {v(t[6])}, {v(t[2])}, {s(sT+1)}")
    a(f"v_lshl_add_u32 {v(t[7])}, {v(t[0])}, 8, {v(t[3])}")
    a(f"v_add3_u32 {v(t[8])}, {v(t[6])}, {v(t[7])}, {s(sT)}")
    QA = t[8]
    for i in range(1, 8):
        a(f"v_xor_b32 {v(QA+i)}, {32*i}, {v(QA)}")
    a(f"s_lshl_b32 {s(sT)}, {s(sN)}, 5")
    a(f"s_sub_u32 {s(sT)}, {s(sL)}, {s(sT)}")
    a(f"s_add_u32 {s(sT)}, {s(sT)}, 32")
    a(f"v_lshlrev_b32 {v(t[1])}, 2, {v(t[1])}")
    a(f"v_sub_u32 {v(t[1])}, {s(sT)}, {v(t[1])}")
    for r in range(16):
        a(f"v_cmp_lt_i32 {s(sMASK+2*r,2)}, {8*(r//4)+r%4}, {v(t[1])}")
    for r in range(64):
        a(f"v_mov_b32 {v(O+r)}, 0")
    a(f"v_mov_b32 {v(LS)}, 0")
    a(f"s_add_u32 {s(sEND)}, {s(sN)}, 2")
    a(f"s_lshl_b32 {s(sEND)}, {s(sEND)}, 17")
    for tt in range(4):
        a(f"s_add_u32 {s(sST+tt)}, {s(sQ)}, {tt*8*4096}")
    c = math.log2(math.e) / math.sqrt(128.0)
    a(f"s_mov_b32 {s(sC)}, {f32(c)}")
    a(f"s_mov_b32 {s(sC+1)}, {f32(c)}")
    a("s_waitcnt vmcnt(10)")
    for i in range(8):
        a(f"ds_read_b128 {v(Q+4*i,4)}, {v(QA+i)}")
    a(f"s_add_u32 m0, {s(STG+3)}, {s(sWB)}")
    a(f"s_mov_b32 {s(sOFF)}, {2*TILE}")
    K0A, K1A = S[0], S[0] + 8
    for i in range(8):
        a(f"v_add_u32 {v(K0A+i)}, {s(STG+0)}, {v(KA+i)}")
    for i in range(8):
        a(f"v_add_u32 {v(K1A+i)}, {s(STG+1)}, {v(KA+i)}")
    a("s_waitcnt lgkmcnt(0)")
    a.extend(pair_dmas(s(sOFF)))
    for r in range(32):
        x = t[(r % 4) * 2]
        a(f"v_lshlrev_b32 {v(x)}, 16, {v(Q+r)}")
        a(f"v_and_b32 {v(x+1)}, 0xffff0000, {v(Q+r)}")
        a(f"v_pk_mul_f32 {v(x,2)}, {v(x,2)}, {s(sC,2)}")
        a(cvt(Q + r, x))
    a("s_waitcnt vmcnt(12)")
    a("s_barrier")
    for i in range(8):
        a(kread(i, K0A, 0))
    S0 = VF
    for i in range(8):
        a(f"s_waitcnt lgkmcnt({7-i})")
        a(mfma(S0, KF + 4 * i, Q + 4 * i, "0" if i == 0 else S0))
    a(f"s_add_u32 m0, {s(STG+0)}, {s(sWB)}")
    a(f"s_mov_b32 {s(sOFF)}, {3*TILE}")
    a("s_waitcnt vmcnt(8)")
    a("s_barrier")
    for i in range(8):
        a(kread(i, K1A, 0))
    a.extend(pair_dmas(s(sOFF)))
    a(f"s_mov_b32 {s(sOFF)}, {4*TILE}")
    a(f"s_cmp_eq_u32 {s(sREDO)}, 1")
    a("s_cbranch_scc1 L_havemax")
    a(f"v_max3_f32 {v(M)}, {v(S0)}, {v(S0+1)}, {v(S0+2)}")
    for r in range(3, 15, 2):
        a(f"v_max3_f32 {v(M)}, {v(M)}, {v(S0+r)}, {v(S0+r+1)}")
    a(f"v_max_f32 {v(M)}, {v(M)}, {v(S0+15)}")
    a(f"v_mov_b32 {v(t[0])}, {v(M)}")
    a("s_nop 1")
    a(f"v_permlane32_swap_b32 {v(M)}, {v(t[0])}")
    a(f"v_max_f32 {v(M)}, {v(M)}, {v(t[0])}")
    a.label("L_havemax")
    for r in range(16):
        a(f"v_sub_f32 {v(CI+r)}, 0, {v(M)}")
    a("s_waitcnt lgkmcnt(0)")
    a(f"s_bitcmp1_b32 {s(sN)}, 0")
    a("s_cbranch_scc1 L_pre1")
    for par in range(2):
        if par == 1:
            a.label("L_pre1")
        cur = S[par]
        for r in range(16):
            a(f"v_sub_f32 {v(cur+r)}, {v(S0+r)}, {v(M)}")
        for r in range(6):
            a(exp(cur + r))
        for r in range(5):
            a(add(cur + r))
        a(cvt(P + 0, cur + 0))
        a(cvt(P + 1, cur + 2))
        a(f"s_bitcmp1_b32 {s(sN)}, 1")
        if par == 0:
            a("s_cbranch_scc1 L_body0")
            a("s_branch L_body2")
        else:
            a("s_cbranch_scc1 L_body3")
            a("s_branch L_body1")

    def softmax_fill(slot, cur, nxt):
        f = []
        f.append(exp(cur + slot + 6) if slot < 10 else exp(nxt + slot - 10))
        f.append(add(cur + slot + 5) if slot <= 10 else add(nxt + slot - 11))
        if slot % 2 == 0:
            if slot <= 10:
                f.append(cvt(P + (slot + 4) // 2, cur + slot + 4))
            else:
                f.append(cvt(P + (slot - 12) // 2, nxt + slot - 12))
        return f

    vplan = [3, 3, 3, 3, 2, 2]

    a(".p2align 6")
    for b in range(4):
        a.label(f"L_body{b}")
        cur, nxt = S[b & 1], S[(b + 1) & 1]
        vr = [vread(VF, f, u, b) for f in range(8) for u in range(2)]
        kr = [kread(i, KA, (b + 1) & 3) for i in range(8)]
        dm = pair_dmas(s(sOFF))
        for slot in range(16):
            if slot == 0:
                a("s_waitcnt lgkmcnt(0)")
            if slot == 8:
                a("s_waitcnt vmcnt(8) lgkmcnt(0)")
            if slot < 8:
                a(mfma(nxt, KF + 4 * slot, Q + 4 * slot, CI if slot == 0 else nxt))
            else:
                f = slot - 8
                a(mfma(O + 16 * (f % 4), VF + 4 * f, P + 4 * (f // 4), O + 16 * (f % 4)))
            if slot == 8:
                a("s_barrier")
            mem = []
            if slot < len(vplan):
                mem += [vr.pop(0) for _ in range(vplan[slot])]
            if 8 <= slot < 12:
                mem += [kr.pop(0), kr.pop(0)]
            if slot == 7:
                mem.append(f"s_mov_b32 m0, {s(sM0+b)}")
            if slot >= 12:
                mem.append(dm.pop(0))
            fill = softmax_fill(slot, cur, nxt)
            seq = []
            while mem or fill:
                if mem:
                    seq.append(mem.pop(0))
                if fill:
                    seq.append(fill.pop(0))
            a.extend(seq)
        a(f"s_add_u32 {s(sOFF)}, {s(sOFF)}, {TILE}")
        if b == 3:
            a(f"s_cmp_lt_u32 {s(sOFF)}, {s(sEND)}")
            a("s_cbranch_scc1 L_body0")

    cur, nxt = S[0], S[1]
    a(f"v_mov_b32 {v(t[0])}, 0xff800000")
    for r in range(16):
        a(f"v_cndmask_b32 {v(CI+r)}, {v(t[0])}, {v(CI+r)}, {s(sMASK+2*r,2)}")
    P2 = CI
    vr = [vread(VF, f, u, 0) for f in range(8) for u in range(2)]
    vr2 = [vread(KF, f, u, 1) for f in range(8) for u in range(2)]
    a("s_waitcnt lgkmcnt(0)")
    a("s_nop 0")
    last = []
    for r in range(0, 16, 2):
        last.append([exp(nxt + r), exp(nxt + r + 1)])
    for slot in range(16):
        if slot == 8:
            a("s_waitcnt vmcnt(8) lgkmcnt(0)")
        if slot < 8:
            a(mfma(nxt, KF + 4 * slot, Q + 4 * slot, CI if slot == 0 else nxt))
        else:
            f = slot - 8
            a(mfma(O + 16 * (f % 4), VF + 4 * f, P + 4 * (f // 4), O + 16 * (f % 4)))
        if slot == 8:
            a("s_barrier")
        mem = []
        if slot < len(vplan):
            mem += [vr.pop(0) for _ in range(vplan[slot])]
        if 8 <= slot < 14:
            mem += [vr2.pop(0) for _ in range(vplan[slot - 8])]
        fill = []
        if slot < 10:
            fill.append(exp(cur + slot + 6))
        if slot <= 10:
            fill.append(add(cur + slot + 5))
            if slot % 2 == 0:
                fill.append(cvt(P + (slot + 4) // 2, cur + slot + 4))
        if slot >= 11:
            k = slot - 11
            fill += [exp(nxt + 2 * k), exp(nxt + 2 * k + 1)]
            if k >= 1:
                fill.append(cvt(P2 + k - 1, nxt + 2 * k - 2))
        seq = []
        while mem or fill:
            if mem:
                seq.append(mem.pop(0))
            if fill:
                seq.append(fill.pop(0))
        a.extend(seq)
    a("s_waitcnt lgkmcnt(0)")
    a("s_nop 0")
    adds = [add(nxt + r) for r in range(16)]
    for f in range(8):
        a(mfma(O + 16 * (f % 4), KF + 4 * f, P2 + 4 * (f // 4), O + 16 * (f % 4)))
        k = 5 + f
        if k < 8:
            a(exp(nxt + 2 * k))
            a(exp(nxt + 2 * k + 1))
        if k <= 8:
            a(cvt(P2 + k - 1, nxt + 2 * k - 2))
        if f == 3:
            a(adds.pop(0))
            a(adds.pop(0))
        if f >= 4:
            for _ in range(4 if f < 7 else 2):
                a(adds.pop(0))
    assert not adds
    a(f"v_mov_b32 {v(t[0])}, {v(LS)}")
    WA = S[0]
    RA, GO, FL = t[2], t[3], t[4]
    a(f"v_and_b32 {v(t[5])}, 31, {v(TID)}")
    a(f"v_bfe_u32 {v(t[6])}, {v(TID)}, 5, 1")
    a(f"v_permlane32_swap_b32 {v(LS)}, {v(t[0])}")
    a(f"v_and_b32 {v(t[7])}, 7, {v(TID)}")
    a(f"v_add_f32 {v(LS)}, {v(LS)}, {v(t[0])}")
    a(f"s_add_u32 {s(sT)}, {s(sWB)}, {X}")
    a(f"v_rcp_f32 {v(t[1])}, {v(LS)}")
    a(f"v_lshlrev_b32 {v(t[5])}, 7, {v(t[5])}")
    a(f"v_lshl_add_u32 {v(t[5])}, {v(t[6])}, 3, {v(t[5])}")
    a(f"v_lshl_add_u32 {v(t[5])}, {v(t[7])}, 4, {v(t[5])}")
    a(f"v_add_u32 {v(WA)}, {s(sT)}, {v(t[5])}")
    for c8 in range(1, 8):
        a(f"v_xor_b32 {v(WA+c8)}, {16*c8}, {v(WA)}")
    a(f"v_bfe_u32 {v(t[5])}, {v(TID)}, 3, 3")
    a(f"v_xor_b32 {v(t[6])}, {v(t[5])}, {v(t[7])}")
    a(f"v_lshlrev_b32 {v(t[6])}, 4, {v(t[6])}")
    a(f"v_lshl_add_u32 {v(t[6])}, {v(t[5])}, 7, {v(t[6])}")
    a(f"v_add_u32 {v(RA)}, {s(sT)}, {v(t[6])}")
    a(f"v_lshlrev_b32 {v(t[7])}, 4, {v(t[7])}")
    a(f"v_lshl_add_u32 {v(GO)}, {v(t[5])}, 12, {v(t[7])}")
    a(f"s_mov_b32 {s(sT+1)}, {f32(2.0**40)}")
    a(f"v_cmp_nlt_f32 vcc, {v(LS)}, {s(sT+1)}" if False else f"v_cmp_ngt_f32 vcc, {s(sT+1)}, {v(LS)}")
    a(f"v_and_b32 {v(t[5])}, 63, {v(TID)}")
    a(f"v_lshlrev_b32 {v(t[5])}, 2, {v(t[5])}")
    a(f"v_cndmask_b32 {v(FL)}, 0, 1, vcc")
    RB = [VF, VF + 16]
    for hf in range(2):
        for c8 in range(8):
            dt, rq = 2 * hf + c8 // 4, c8 % 4
            o0 = O + 16 * dt + 4 * rq
            for k in range(4):
                a(f"v_mul_f32 {v(o0+k)}, {v(o0+k)}, {v(t[1])}")
            a(cvt(o0, o0))
            a(cvt(o0 + 1, o0 + 2))
            a(f"ds_write_b64 {v(WA+c8)}, {v(o0,2)}")
        for tt in range(4):
            a(f"ds_read_b128 {v(RB[hf]+4*tt,4)}, {v(RA)} offset:{tt*1024}")
        if hf == 1:
            a(f"v_add_u32 {v(t[6])}, {s(sT)}, {v(t[5])}")
            a(f"ds_write_b32 {v(t[6])}, {v(FL)}")
        for tt in range(4):
            a(f"s_waitcnt lgkmcnt({3 - tt + (1 if hf == 1 else 0)})")
            a(f"buffer_store_dwordx4 {v(RB[hf]+4*tt,4)}, {v(GO)}, {s(SRO,4)}, {s(sST+tt)} offen offset:{hf*128} {ST}")
    a(f"s_cmp_eq_u32 {s(sREDO)}, 1")
    a("s_cbranch_scc1 L_end")
    a(f"v_add_u32 {v(t[5])}, {X}, {v(t[5])}")
    a("s_waitcnt lgkmcnt(0)")
    a("s_barrier")
    for k in range(4):
        a(f"ds_read_b32 {v(t[8+k])}, {v(t[5])} offset:{k*4096}")
    a("s_waitcnt lgkmcnt(0)")
    a(f"v_or3_b32 {v(t[8])}, {v(t[8])}, {v(t[9])}, {v(t[10])}")
    a(f"v_or_b32 {v(t[8])}, {v(t[8])}, {v(t[11])}")
    a(f"v_cmp_ne_u32 vcc, 0, {v(t[8])}")
    a("s_nop 4")
    a("s_cbranch_vccnz L_redo")
    a.label("L_end")
    a("s_endpgm")

    a.label("L_redo")
    a("s_waitcnt vmcnt(0)")
    a("s_barrier")
    a(f"v_mov_b32 {v(M)}, 0xff800000")
    a(f"v_mov_b32 {v(t[0])}, 0xff800000")
    a(f"v_subrev_u32 {v(t[8])}, {TILE-2048}, {v(DK0)}")
    a(f"v_add_u32 {v(t[9])}, {65536-1024}, {v(t[8])}")
    a(f"s_add_u32 m0, {s(sWB)}, 2048")
    a(f"s_mov_b32 {s(sOFF)}, 0")
    a(f"s_lshl_b32 {s(sEND)}, {s(sN)}, 17")
    a.label("L_redo_loop")
    a(dma(t[8], SRK, s(sOFF), 0, ""))
    a(dma(t[9], SRK, s(sOFF), 1024, ""))
    a(f"s_add_u32 {s(sOFF)}, {s(sOFF)}, {TILE}")
    a("s_waitcnt vmcnt(0)")
    a("s_barrier")
    for i in range(8):
        a(kread(i, KA, 0))
    a("s_waitcnt lgkmcnt(0)")
    a("s_barrier")
    for i in range(8):
        a(mfma(S[0], KF + 4 * i, Q + 4 * i, "0" if i == 0 else S[0]))
    a("s_nop 15")
    a(f"s_cmp_lt_u32 {s(sOFF)}, {s(sEND)}")
    a("s_cbranch_scc1 L_redo_nomask")
    for r in range(16):
        a(f"v_cndmask_b32 {v(S[0]+r)}, {v(t[0])}, {v(S[0]+r)}, {s(sMASK+2*r,2)}")
    a.label("L_redo_nomask")
    for r in range(0, 16, 2):
        a(f"v_max3_f32 {v(M)}, {v(M)}, {v(S[0]+r)}, {v(S[0]+r+1)}")
    a("s_cbranch_scc1 L_redo_loop")
    a(f"v_mov_b32 {v(t[0])}, {v(M)}")
    a("s_nop 1")
    a(f"v_permlane32_swap_b32 {v(M)}, {v(t[0])}")
    a(f"v_max_f32 {v(M)}, {v(M)}, {v(t[0])}")
    a(f"s_mov_b32 {s(sREDO)}, 1")
    a("s_branch L_restart")

    bad = check_cfg(a.lines)
    for x in bad:
        print("HAZARD", x, file=sys.stderr)

    tab = []
    for (n, sq, q0, hs) in items:
        L = CU[sq + 1] - CU[sq]
        tab.append(CU[sq] | (L << 13) | (q0 << 22) | ((sq & 7) << 26) | (hs << 29))
    out = HEADER
    out += f"; @launch grid=({NWG},1,1) block=(256,1,1) lds=81920\n"
    out += f""".amdgcn_target "amdgcn-amd-amdhsa--gfx950"
.text
.globl {NAME}_kernel
.p2align 8
.type {NAME}_kernel,@function
{NAME}_kernel:
"""
    out += a.text()
    out += ".p2align 7\n.type L_table,@object\nL_table:\n"
    for x in tab:
        out += f".long 0x{x:08x}\n"
    out += f""".size L_table, {4*len(tab)}
.section .rodata,"a"
.p2align 6
.amdhsa_kernel {NAME}_kernel
  .amdhsa_next_free_vgpr 256
  .amdhsa_next_free_sgpr 96
  .amdhsa_accum_offset 256
  .amdhsa_group_segment_fixed_size 0
  .amdhsa_kernarg_size 56
  .amdhsa_user_sgpr_count 2
  .amdhsa_user_sgpr_kernarg_segment_ptr 1
  .amdhsa_system_sgpr_workgroup_id_x 1
.end_amdhsa_kernel
"""
    return out


if __name__ == "__main__":
    ap = argparse.ArgumentParser()
    ap.add_argument("-o", default="cdna_kernels/%s.s" % NAME)
    ap.add_argument("--order", default="desc")
    ap.add_argument("--ld", default="")
    ap.add_argument("--ldq", default="")
    ap.add_argument("--st", default="")
    o = ap.parse_args()
    open(o.o, "w").write(gen(o))
```

```python
import sys, re
def add_spinner(asm, K, fa, op, fb, opb, nrec, rec0=0):
    NAME = "standalone__varlen_attn_packed__ragged"
    m = re.search(r"; @launch (grid=\S+ block=\S+ lds=\d+)", asm)
    asm = asm.replace(m.group(0), f"; @launch kernel={NAME}_kernel {m.group(1)}\n; @launch kernel=spin_kernel grid=(1,1,1) block=(64,1,1) lds=0")
    body = f"""
.text
.p2align 8
.type spin_kernel,@function
spin_kernel:
    s_cmp_ge_u32 s2, 1
    s_cbranch_scc1 L_spin_end
    s_load_dwordx2 s[4:5], s[0:1], 48
    s_mov_b32 s6, 0x100000
    s_mov_b32 s7, 0x20000
    v_lshlrev_b32 v1, 6, v0
    v_mov_b32 v2, {'0' if op=='max' else '-1'}
    v_mov_b32 v3, {'0' if opb=='max' else '-1'}
    s_mov_b32 s8, {rec0*64}
    s_waitcnt lgkmcnt(0)
L_spin_ld:
    buffer_load_dword v4, v1, s[4:7], s8 offen offset:{fa*4} sc1
    buffer_load_dword v5, v1, s[4:7], s8 offen offset:{fb*4} sc1
    s_add_u32 s8, s8, 4096
    s_waitcnt vmcnt(0)
    v_{op}_u32 v2, v2, v4
    v_{opb}_u32 v3, v3, v5
    s_cmp_lt_u32 s8, {(rec0+nrec)*64}
    s_cbranch_scc1 L_spin_ld
    s_mov_b32 s9, 0
    s_mov_b32 s10, {'0' if op=='max' else '-1'}
    s_mov_b32 s11, {'0' if opb=='max' else '-1'}
L_spin_red:
    s_nop 4
    v_readlane_b32 s12, v2, s9
    v_readlane_b32 s13, v3, s9
    s_nop 4
    s_{op}_u32 s10, s10, s12
    s_{opb}_u32 s11, s11, s13
    s_add_u32 s9, s9, 1
    s_cmp_lt_u32 s9, {64 if nrec>=64 else nrec}
    s_cbranch_scc1 L_spin_red
    s_sub_u32 s10, s10, s11
    s_mul_i32 s10, s10, {K}
    s_min_u32 s10, s10, 200000
    s_memrealtime s[14:15]
    s_waitcnt lgkmcnt(0)
L_spin_wait:
    s_memrealtime s[16:17]
    s_waitcnt lgkmcnt(0)
    s_sub_u32 s18, s16, s14
    s_cmp_lt_u32 s18, s10
    s_cbranch_scc1 L_spin_wait
L_spin_end:
    s_endpgm
"""
    desc = """
.amdhsa_kernel spin_kernel
  .amdhsa_next_free_vgpr 16
  .amdhsa_next_free_sgpr 32
  .amdhsa_accum_offset 16
  .amdhsa_group_segment_fixed_size 0
  .amdhsa_kernarg_size 56
  .amdhsa_user_sgpr_count 2
  .amdhsa_user_sgpr_kernarg_segment_ptr 1
  .amdhsa_system_sgpr_workgroup_id_x 1
.end_amdhsa_kernel
"""
    asm = asm.replace('.section .rodata,"a"', body + '.section .rodata,"a"')
    asm = asm.rstrip() + "\n.p2align 6" + desc
    return asm
if __name__ == "__main__":
    src, dst, K, fa, op, fb, opb, nrec = sys.argv[1:9]
    rec0 = int(sys.argv[9]) if len(sys.argv) > 9 else 0
    open(dst, "w").write(add_spinner(open(src).read(), int(K), int(fa), op, int(fb), opb, int(nrec), rec0))
```

```python
import sys, math, struct, argparse, json
from asmlib import Asm, v, s, check_cfg

NAME = "standalone__varlen_attn_packed__ragged"
CU = [0, 205, 520, 906, 1211, 1583, 1912, 2114, 2429, 2893, 2977, 3099, 3593, 3692, 4133, 4346, 4464]
HEADER = open("cdna_kernels/%s.s.ref" % NAME).read().split("; Override")[0]
MAXJ = 4


def f32(x):
    return "0x%08x" % struct.unpack("<I", struct.pack("<f", x))[0]


def ar(a, n=1):
    return f"a{a}" if n == 1 else f"a[{a}:{a + n - 1}]"


def default_plan():
    n32 = [(CU[i + 1] - CU[i] + 31) // 32 for i in range(16)]
    split = {0: [2, 2], 1: [3, 2], 2: [3, 2, 2], 3: [3, 2], 4: [3, 3], 5: [3, 3], 6: [2, 2], 7: [3, 2],
             8: [3, 3, 2], 9: [2], 10: [2], 11: [3, 3, 2], 12: [2], 13: [3, 2, 2], 14: [2, 2], 15: [2]}
    J = {}
    for sq, cs in split.items():
        q = 0
        for i, c in enumerate(cs):
            J[(sq, i)] = (sq, q, c)
            q += 4 * c
    pairs = [((11, 0), (9, 0)), ((11, 1), (10, 0)), ((8, 0), (12, 0)), ((8, 1), (15, 0)),
             ((13, 0), (0, 0)), ((2, 0), (0, 1)), ((4, 0), (6, 0)), ((4, 1), (6, 1)),
             ((11, 2), (14, 0)), ((5, 0), (14, 1)), ((5, 1), (1, 1)), ((8, 2), (3, 1)),
             ((1, 0), (7, 1)), ((3, 0), (2, 1)), ((7, 0), (2, 2)), ((13, 1), (13, 2))]
    plan = []
    for p in pairs:
        for hs in range(2):
            plan.append([(J[x][0], hs, J[x][1], J[x][2]) for x in p])
    return plan


def check_plan(plan):
    cover = {}
    for jobs in plan:
        assert 1 <= len(jobs) <= MAXJ
        for i, (sq, hs, q, c) in enumerate(jobs):
            for x in range(q, q + 4 * c):
                assert (sq, hs, x) not in cover
                cover[(sq, hs, x)] = 1
            n = (CU[sq + 1] - CU[sq] + 31) // 32
            if i + 1 < len(jobs):
                assert n >= max(4, 4 * jobs[i + 1][3]), ("aux capacity", jobs)
    for sq in range(16):
        for hs in range(2):
            for x in range((CU[sq + 1] - CU[sq] + 15) // 16):
                assert (sq, hs, x) in cover, (sq, hs, x)


class VM:
    def __init__(self):
        self.q = []

    def issue(self, tag, n=1):
        self.q += [tag] * n

    def need(self, tag):
        last = max(i for i, t in enumerate(self.q) if t == tag)
        return len(self.q) - 1 - last


def gen(o):
    a = Asm()
    plan = json.load(open(o.plan)) if o.plan else default_plan()
    if not o.nocheck:
        check_plan(plan)
    NWG = 8 * len(plan)
    LD, LDQ, ST = o.ld, o.ldq, o.st
    CS = [2, 3]
    TILE = 131072
    ONES, MASK, KA, VA = 192, 196, 200, 204
    DV0, DV1, DK0, DK1, DQ = 212, 213, 214, 215, 216
    QA, OWA, ORA, GO = 217, 221, 222, 223
    ZERO = 224
    TA = 228
    T = 240
    TID, G4 = 248, 249
    STAMP = 252
    KF, VF, RB = 0, 32, 64

    def RO(c, u, dt): return 32 * u + 4 * dt
    def RL(c, u): return 32 * c + 4 * u
    def RS(c, u): return 36 * c + 8 * u
    def RP(c, u): return 44 * c + 4 * u
    def RQ(c, u): return 48 * c + 16 * u
    SRQ, SRK, SRV, SRO = 12, 16, 20, 24
    sW, sWB, sPRIV = 28, 29, 30
    sVOFF, sKOFF, sKEND, sNREC = 31, 32, 33, 34
    sAOFF, sAM0, sAMAX = 35, 36, 37
    sCNT, sPH, sFAIL, sJIDX = 38, 39, 40, 41
    sM0 = 42
    sC = 46
    sACC = 48
    sQROW = 50
    sLO, sRNG = 51, 52
    sT = 54
    sD = 64
    sNX = 76
    sL = 78
    sD0 = 84
    sTS = 92
    RING, PRIV, PRIVSZ = 0, 65536, 24576
    QOFF, QP = 4608, 1056

    def mf(d, x, y, c):
        return f"v_mfma_f32_16x16x32_bf16 {d}, {x}, {y}, {c}"

    def qk(c, u, f):
        kb, ds = f // 4, f % 4
        d = v(RS(c, u) + 4 * kb, 4)
        return mf(d, ar(KF + 4 * f, 4), v(RQ(c, u) + 4 * ds, 4), "0" if ds == 0 else d)

    def pv(c, u, dt):
        d = v(RO(c, u, dt), 4)
        return mf(d, ar(VF + 4 * dt, 4), v(RP(c, u), 4), d)

    def rs(c, u, ones):
        d = v(RL(c, u), 4)
        return mf(d, v(ones, 4), v(RP(c, u), 4), d)

    def dma(vo, srd, so, off, fl):
        return f"buffer_load_dwordx4 {v(vo)}, {s(srd,4)}, {so} offen offset:{off} {fl} lds"

    def ring_dmas():
        return [dma(DV0, SRV, s(sVOFF), 0, LD), dma(DV1, SRV, s(sVOFF), 1024, LD),
                dma(DK0, SRK, s(sKOFF), 2048, LD), dma(DK1, SRK, s(sKOFF), 3072, LD)]

    def aux_dma():
        return dma(DQ, SRQ, s(sAOFF), 0, LDQ)

    def aux_adv():
        return [f"s_add_u32 {s(sAOFF)}, {s(sAOFF)}, {4*4096}", f"s_add_u32 {s(sAM0)}, {s(sAM0)}, {QP}",
                f"s_min_u32 {s(sAM0)}, {s(sAM0)}, {s(sAMAX)}"]

    def ring_adv():
        return [f"s_mov_b32 {s(sVOFF)}, {s(sKOFF)}",
                f"s_sub_u32 {s(SRV+2)}, {s(SRK+2)}, 2048",
                f"s_add_u32 {s(sKOFF)}, {s(sKOFF)}, {TILE}",
                f"s_cmp_eq_u32 {s(sKOFF)}, {s(sKEND)}",
                f"s_cselect_b32 {s(SRK+2)}, {s(sNREC)}, {s(SRK+2)}",
                f"s_cselect_b64 {s(sKOFF,2)}, {s(sNX,2)}, {s(sKOFF,2)}"]

    def kread(f, base, stage):
        kb, ds = f // 4, f % 4
        return f"ds_read_b128 {ar(KF+4*f,4)}, {v(base+ds)} offset:{stage*16384+kb*1024}"

    def vread(dt, hb, base, stage):
        return f"ds_read_b64_tr_b16 {ar(VF+4*dt+2*hb,2)}, {v(base+dt)} offset:{stage*16384+hb*1024}"

    def ex(c, u, r):
        return f"v_exp_f32 {v(RS(c,u)+r)}, {v(RS(c,u)+r)}"

    def cv(c, u, k):
        return f"v_cvt_pk_bf16_f32 {v(RP(c,u)+k)}, {v(RS(c,u)+2*k)}, {v(RS(c,u)+2*k+1)}"

    def cvt(d, r):
        return f"v_cvt_pk_bf16_f32 {v(d)}, {v(r)}, {v(r+1)}"

    def stamp(k, clk=False):
        if not o.stamp:
            return
        a(f"{'s_memtime' if clk else 's_memrealtime'} {s(sTS,2)}")
        a("s_waitcnt lgkmcnt(0)")
        if isinstance(k, int):
            a(f"v_writelane_b32 {v(STAMP)}, {s(sTS)}, {k}")
        else:
            a(f"s_mul_i32 {s(sTS+1)}, {s(sJIDX)}, 6")
            a(f"s_add_u32 m0, {s(sTS+1)}, {k[0]}")
            a(f"v_writelane_b32 {v(STAMP)}, {s(sTS)}, m0")

    class Slot:
        def __init__(self, m, need=None):
            self.m = m
            self.need = need
            self.free = None
            self.fill = []

    def emit(slots, pending, salu, D=5, tail_need=None):
        q = list(pending)
        done = -1
        for i, sl in enumerate(slots):
            nxt = slots[i + 1].need if i + 1 < len(slots) else tail_need
            if nxt is not None:
                idx = max(k for k, (t_, _) in enumerate(q) if t_ == nxt)
                if idx > done:
                    old = [k for k, (_, si) in enumerate(q) if si <= i - D]
                    idx = max([idx] + old)
                    n = len(q) - 1 - idx
                    assert n <= 15
                    w = f"lgkmcnt({n})"
                    if sl.free is not None:
                        assert sl.free.startswith("s_waitcnt"), sl.free
                        sl.free += " " + w
                    else:
                        sl.free = "s_waitcnt " + w
                    done = idx
            for (txt, tag) in sl.fill:
                if txt.startswith("ds_"):
                    q.append((tag, i))
        pos = 0
        for (e, txt) in salu:
            pos = max(pos, e)
            while slots[pos].free is not None:
                pos += 1
            slots[pos].free = txt
        for sl in slots:
            if sl.m:
                a(sl.m)
            if sl.free:
                a(sl.free)
            for (txt, _) in sl.fill:
                a(txt)

    def put(slots, base, layout, items):
        for i, l in enumerate(layout):
            for ch in l:
                if ch == "-":
                    continue
                slots[base + i].fill.append(items[ch].pop(0))

    WB_LAY = ["tt", "e", "tt", "e", "tc", "e", "tt", "tc", "e", "tt", "e", "tc", "e", "tt", "e", "tc", "tt"]
    vpend = []
    k_ = 0
    for i_, l_ in enumerate(WB_LAY):
        for ch_ in l_:
            if ch_ == "t":
                vpend.append((f"V{k_//2}", i_ - 17))
                k_ += 1

    def window(c, upv, uqk, ones, first=False, kneed=False):
        sl = []
        if upv is not None:
            if first:
                sl.append(Slot(rs(c, upv, ones)))
            for dt in range(8):
                sl.append(Slot(pv(c, upv, dt), f"V{dt}" if first else None))
            if not first:
                sl.append(Slot(rs(c, upv, ones)))
        if uqk is not None:
            for f in range(8):
                sl.append(Slot(qk(c, uqk, f), f"K{f}" if kneed else None))
        return sl

    def sm_items(c, u, skip0=False):
        return {"e": [(ex(c, u, r), None) for r in range(1 if skip0 else 0, 8)],
                "c": [(cv(c, u, k), None) for k in range(4)]}

    def body(c, p):
        a.label(f"L_body{c}_{p}")
        slots, salu = [], []
        g = [(x, None) for x in ring_dmas()]
        aux = [(aux_dma(), None)]
        kr = [(kread(f, KA, (p - 1) & 3), f"K{f}") for f in range(8)]
        if c == 2:
            slots += window(c, 0, 0, ONES, first=True, kneed=True)
            it = sm_items(c, 1)
            it.update(d=kr, g=g, x=aux, z=[(ex(c, 0, 0), None)])
            put(slots, 0, o.wa2.split(), it)
            gpos = [i for i, l in enumerate(o.wa2.split()) if "g" in l]
            xpos = [i for i, l in enumerate(o.wa2.split()) if "x" in l][0]
        else:
            slots += window(c, 0, 2, ONES, first=True)
            it = sm_items(c, 1)
            it.update(g=g, x=aux)
            lay = ["e", "-", "e", "xc", "e", "g", "e", "gc", "e", "g", "e", "gc", "e", "e", "c", "-", "-"]
            put(slots, 0, lay, it)
            gpos = [5, 7, 9, 11]
            xpos = 3
            slots += window(c, 1, 0, ONES, kneed=True)
            it = sm_items(c, 2)
            it.update(d=kr, z=[(ex(c, 0, 0), None)])
            put(slots, 17, ["dd", "e", "dd", "e", "dc", "e", "dd", "e", "dc", "e", "-", "e", "c", "e", "e", "c", "z"], it)
        b0 = len(slots)
        slots += window(c, c - 1, 1, ONES)
        it = sm_items(c, 0, skip0=True)
        it.update(t=[(vread(dt, hb, VA, p), f"V{dt}") for dt in range(8) for hb in range(2)])
        put(slots, b0, WB_LAY, it)
        slots[b0 - 1].free = "s_waitcnt vmcnt(10)"
        slots[b0].free = "s_barrier"
        fixed = {xpos - 1: f"s_mov_b32 m0, {s(sAM0)}", gpos[0] - 1: f"s_mov_b32 m0, {s(sM0+((p+2)&3))}"}
        late = [(b0 + 1, x) for x in aux_adv() + ring_adv()]
        late += [(b0 + 1, f"s_mov_b32 {s(sPH)}, {((p+1)&3)*16384}"),
                 (b0 + 15, f"s_sub_u32 {s(sCNT)}, {s(sCNT)}, 1")]
        for k, txt in fixed.items():
            slots[k].m0 = txt
        order = [(k, txt) for k, txt in sorted(fixed.items())]
        emit_body(slots, order, late)
        if p == 3:
            a(f"s_cbranch_scc0 L_body{c}_0")
        else:
            a(f"s_cbranch_scc1 L_last{c}")

    def emit_body(slots, pinned, late):
        import copy
        dry = copy.deepcopy(slots)
        keep = a.lines
        a.lines = []
        emit(dry, vpend, [])
        a.lines = keep
        taken = {i for i, sl in enumerate(dry) if sl.free is not None}
        lo = -1
        res = []
        for k, txt in pinned:
            kk = k
            while kk in taken:
                kk -= 1
            assert kk > lo, "no free position for m0 write"
            taken.add(kk)
            res.append((kk, txt))
            lo = k + 0
        emit(slots, vpend, res + late)

    def scale_q(c, u):
        for r in range(16):
            q = RQ(c, u) + r
            x = T + (r % 4) * 2
            a(f"v_lshlrev_b32 {v(x)}, 16, {v(q)}")
            a(f"v_and_b32 {v(x+1)}, 0xffff0000, {v(q)}")
            a(f"v_pk_mul_f32 {v(x,2)}, {v(x,2)}, {s(sC,2)}")
            a(cvt(q, x))

    def read_q(c, u):
        for ds in range(4):
            a(f"ds_read_b128 {v(RQ(c,u)+4*ds,4)}, {v(QA+ds)} offset:{u*4*QP}")

    def zero_acc(c):
        for r in range(0, 36 * c, 16):
            a(f"v_mfma_f32_32x32x16_bf16 {v(r,16)}, {v(ZERO,4)}, {v(ZERO,4)}, 0")

    def add_head(d):
        a(f"s_lshr_b32 {s(sT)}, {s(d+1)}, 17")
        a(f"s_add_u32 {s(sT)}, {s(sT)}, s2")
        a(f"s_and_b32 {s(sT)}, {s(sT)}, 7")
        a(f"s_lshl_b32 {s(sT)}, {s(sT)}, 9")
        a(f"s_add_u32 {s(d)}, {s(d)}, {s(sT)}")

    def k_state(d, off, nrec):
        a(f"s_and_b32 {s(sT)}, {s(d+1)}, 0x1ff")
        a(f"s_lshl_b32 {s(sT+1)}, {s(sT)}, 12")
        a(f"s_add_u32 {s(sT+1)}, {s(sT+1)}, {s(d)}")
        a(f"s_sub_u32 {s(sT+1)}, {s(sT+1)}, {4096-256-2048}")
        a(f"s_max_i32 {s(nrec)}, {s(sT+1)}, 2048")
        a(f"s_add_u32 {s(sT)}, {s(sT)}, 31")
        a(f"s_lshr_b32 {s(sT)}, {s(sT)}, 5")
        a(f"s_lshl_b32 {s(sT)}, {s(sT)}, 17")
        a(f"s_add_u32 {s(off+1)}, {s(sT)}, {s(d)}")
        a(f"s_mov_b32 {s(off)}, {s(d)}")

    def q_setup(d):
        a(f"s_bfe_u32 {s(sT)}, {s(d+1)}, {14 | (3 << 16)}")
        a(f"s_bfe_u32 {s(sT+1)}, {s(d+1)}, {9 | (5 << 16)}")
        a(f"s_mul_i32 {s(sT+2)}, {s(sT)}, {s(sW)}")
        a(f"s_add_u32 {s(sT+1)}, {s(sT+1)}, {s(sT+2)}")
        a(f"s_lshl_b32 {s(sAOFF)}, {s(sT+1)}, 16")
        a(f"s_add_u32 {s(sAOFF)}, {s(sAOFF)}, {s(d)}")
        a(f"s_add_u32 {s(sT+1)}, {s(sT+1)}, {s(sT)}")
        a(f"s_lshl_b32 {s(sT+1)}, {s(sT+1)}, 4")
        a(f"s_and_b32 {s(sT)}, {s(d+1)}, 0x1ff")
        a(f"s_min_u32 {s(sT)}, {s(sT)}, {s(sT+1)}")
        a(f"s_lshl_b32 {s(sT)}, {s(sT)}, 12")
        a(f"s_add_u32 {s(sT)}, {s(sT)}, {s(d)}")
        a(f"s_sub_u32 {s(sT)}, {s(sT)}, {4096-256}")
        a(f"s_max_i32 {s(SRQ+2)}, {s(sT)}, 0")
        a(f"s_add_u32 {s(sAM0)}, {s(sPRIV)}, {QOFF}")

    def job_setup(c):
        a(f"s_and_b32 {s(sT)}, {s(sD+1)}, 0x1ff")
        a(f"s_lshl_b32 {s(sT+1)}, {s(sT)}, 12")
        a(f"s_add_u32 {s(sT+1)}, {s(sT+1)}, {s(sD)}")
        a(f"s_sub_u32 {s(SRO+2)}, {s(sT+1)}, {4096-256}")
        a(f"s_bfe_u32 {s(sT+1)}, {s(sD+1)}, {9 | (5 << 16)}")
        a(f"s_mul_i32 {s(sT+2)}, {s(sW)}, {c}")
        a(f"s_add_u32 {s(sT+1)}, {s(sT+1)}, {s(sT+2)}")
        a(f"s_lshl_b32 {s(sQROW)}, {s(sT+1)}, 16")
        a(f"s_add_u32 {s(sQROW)}, {s(sQROW)}, {s(sD)}")
        a(f"s_sub_u32 {s(sT)}, {s(sT)}, 33")
        a(f"s_lshr_b32 {s(sCNT)}, {s(sT)}, 5")
        a(f"s_and_b32 {s(sT)}, {s(sT)}, 31")
        a(f"s_add_u32 {s(sT)}, {s(sT)}, 1")
        a(f"v_sub_u32 {v(T)}, {s(sT)}, {v(G4)}")
        a(f"v_lshlrev_b32 {v(T)}, 4, {v(T)}")
        for jj in range(4):
            k0 = 16 * (jj >> 1) + 2 * (jj & 1)
            a(f"v_subrev_u32 {v(T+1)}, {16*k0}, {v(T)}")
            a(f"v_med3_i32 {v(T+1)}, {v(T+1)}, 0, 31")
            a(f"v_bfe_u32 {v(MASK+jj)}, {v(ONES)}, 0, {v(T+1)}")
        a(f"s_mov_b64 {s(sACC,2)}, 0")

    def pro_tail(c, vbase, vstage):
        vr = [vread(dt, hb, vbase, vstage) for dt in range(8) for hb in range(2)]
        a.extend(vr[:8])
        for r in range(4):
            a(ex(c, 0, r))
        lay = ["tt", "e", "tt", "e", "tt", "e", "tt", "e"]
        rest = vr[8:]
        ee = [ex(c, 0, r) for r in range(4, 8)]
        for f in range(8):
            a(qk(c, 1, f))
            for ch in lay[f]:
                a(rest.pop(0) if ch == "t" else ee.pop(0))
        for k in range(4):
            a(cv(c, 0, k))

    a(f"s_cmp_ge_u32 s2, {NWG}")
    a("s_cbranch_scc1 L_end")
    a(f"s_load_dwordx2 {s(SRQ,2)}, s[0:1], 0")
    a(f"s_load_dwordx2 {s(SRK,2)}, s[0:1], 8")
    a(f"s_load_dwordx2 {s(SRV,2)}, s[0:1], 16")
    a(f"s_load_dwordx2 {s(SRO,2)}, s[0:1], 32")
    a(f"s_getpc_b64 {s(sT,2)}")
    a.label("L_pc")
    a(f"s_lshr_b32 {s(sT+2)}, s2, 3")
    a(f"s_lshl_b32 {s(sT+2)}, {s(sT+2)}, 5")
    a(f"s_add_u32 {s(sT+2)}, {s(sT+2)}, L_table-L_pc")
    a(f"s_load_dwordx8 {s(sD,8)}, {s(sT,2)}, {s(sT+2)}")
    a(f"v_mov_b32 {v(TID)}, v0")
    t = [T + i for i in range(8)]
    a(f"v_lshrrev_b32 {v(t[0])}, 6, v0")
    a(f"v_and_b32 {v(t[1])}, 15, v0")
    a(f"v_readfirstlane_b32 {s(sW)}, {v(t[0])}")
    a(f"v_lshrrev_b32 {v(t[2])}, 4, v0")
    a(f"v_and_b32 {v(t[3])}, 3, {v(t[2])}")
    a(f"v_lshlrev_b32 {v(G4)}, 2, {v(t[3])}")
    a(f"v_xor_b32 {v(t[4])}, {v(G4)}, {v(t[1])}")
    a(f"v_lshlrev_b32 {v(t[4])}, 4, {v(t[4])}")
    a(f"v_lshl_add_u32 {v(DQ)}, {v(t[3])}, 12, {v(t[4])}")
    a(f"v_xor_b32 {v(t[4])}, {v(t[2])}, {v(t[1])}")
    a(f"v_lshlrev_b32 {v(t[4])}, 4, {v(t[4])}")
    a(f"v_lshl_add_u32 {v(DK0)}, {v(t[2])}, 12, {v(t[4])}")
    a(f"v_add_u32 {v(DK1)}, {65536-1024}, {v(DK0)}")
    a(f"v_and_b32 {v(t[4])}, 7, {v(t[2])}")
    a(f"v_lshlrev_b32 {v(t[4])}, 1, {v(t[4])}")
    a(f"v_xor_b32 {v(t[4])}, {v(t[4])}, {v(t[1])}")
    a(f"v_lshlrev_b32 {v(t[4])}, 4, {v(t[4])}")
    a(f"v_lshl_add_u32 {v(DV0)}, {v(t[2])}, 12, {v(t[4])}")
    a(f"v_add_u32 {v(DV1)}, {65536-1024}, {v(DV0)}")
    a(f"s_lshl_b32 {s(sWB)}, {s(sW)}, 12")
    a(f"s_mul_i32 {s(sPRIV)}, {s(sW)}, {PRIVSZ}")
    a(f"s_add_u32 {s(sPRIV)}, {s(sPRIV)}, {PRIV}")
    a(f"s_add_u32 {s(sAMAX)}, {s(sPRIV)}, {QOFF+12*QP}")
    for b in range(4):
        a(f"s_add_u32 {s(sM0+b)}, {s(sWB)}, {b*16384}")
    for srd in (SRQ, SRK, SRV, SRO):
        a(f"s_mov_b32 {s(srd+3)}, 0x20000")
    a(f"s_mov_b32 {s(sFAIL)}, 0")
    a(f"s_mov_b32 {s(sJIDX)}, 0")
    a(f"s_mov_b64 {s(sD+8,2)}, 0")
    if o.stamp:
        a(f"v_mov_b32 {v(STAMP)}, 0")
    a("s_waitcnt lgkmcnt(0)")
    stamp(0)
    stamp(1, True)
    add_head(sD)
    q_setup(sD)
    a(f"s_mov_b32 m0, {s(sAM0)}")
    a(f"s_sub_u32 {s(SRK)}, {s(SRK)}, 2048")
    for p in range(4):
        a(aux_dma())
        if p == 0:
            a(f"s_subb_u32 {s(SRK+1)}, {s(SRK+1)}, 0")
        a(f"s_add_u32 m0, m0, {QP}")
        a(f"s_add_u32 {s(sAOFF)}, {s(sAOFF)}, {4*4096}")
    k_state(sD, sKOFF, SRK + 2)
    a(f"s_mov_b32 m0, {s(sM0+0)}")
    a("s_nop 0")
    a.extend(ring_dmas()[2:])
    a(f"s_add_u32 m0, {s(sAM0)}, {4*QP}")
    a.extend(ring_adv()[:3])
    for p in range(4):
        a(aux_dma())
        a(f"s_add_u32 m0, m0, {QP}")
        a(f"s_add_u32 {s(sAOFF)}, {s(sAOFF)}, {4*4096}")
    a(f"s_mov_b32 m0, {s(sM0+1)}")
    a("s_nop 0")
    a.extend(ring_dmas())
    a.extend(ring_adv()[:3])
    for k in range(2, 2 * MAXJ, 2):
        add_head(sD + k)
    k_state(sD + 2, sNX, sNREC)
    for k in range(0, 2 * MAXJ, 2):
        a(f"s_mov_b64 {s(sD0+k,2)}, {s(sD+k,2)}")
    cst = math.log2(math.e) / math.sqrt(128.0)
    a(f"s_mov_b32 {s(sC)}, {f32(cst)}")
    a(f"s_mov_b32 {s(sC+1)}, {f32(cst)}")
    lo_bits = struct.unpack("<I", struct.pack("<f", 2.0 ** -60))[0]
    hi_bits = struct.unpack("<I", struct.pack("<f", 2.0 ** 80))[0]
    a(f"s_mov_b32 {s(sLO)}, {lo_bits}")
    a(f"s_mov_b32 {s(sRNG)}, {hi_bits-lo_bits}")
    for k in range(4):
        a(f"v_mov_b32 {v(ONES+k)}, 0x3f803f80")
        a(f"v_mov_b32 {v(ZERO+k)}, 0")
    a(f"v_lshrrev_b32 {v(t[4])}, 2, {v(t[1])}")
    a(f"v_and_b32 {v(t[5])}, 3, {v(t[1])}")
    a(f"v_xor_b32 {v(t[6])}, {v(t[3])}, {v(t[1])}")
    a(f"v_lshlrev_b32 {v(t[6])}, 4, {v(t[6])}")
    a(f"v_lshl_add_u32 {v(t[6])}, {v(t[4])}, 12, {v(t[6])}")
    a(f"v_lshl_add_u32 {v(t[6])}, {v(t[5])}, 8, {v(t[6])}")
    a(f"v_add_u32 {v(KA)}, 2048, {v(t[6])}")
    for ds in range(1, 4):
        a(f"v_xor_b32 {v(KA+ds)}, {64*ds}, {v(KA)}")
    a(f"v_and_b32 {v(t[6])}, 4, {v(G4)}")
    a(f"v_add_u32 {v(t[6])}, {v(t[6])}, {v(t[4])}")
    a(f"v_lshlrev_b32 {v(t[6])}, 5, {v(t[6])}")
    a(f"v_lshl_add_u32 {v(t[6])}, {v(t[5])}, 3, {v(t[6])}")
    a(f"v_lshl_add_u32 {v(t[6])}, {v(t[4])}, 8, {v(t[6])}")
    a(f"v_lshl_add_u32 {v(VA)}, {v(t[3])}, 12, {v(t[6])}")
    for dt in range(1, 8):
        a(f"v_xor_b32 {v(VA+dt)}, {32*dt}, {v(VA)}")
    a(f"v_mul_u32_u24 {v(t[6])}, {QP}, {v(t[4])}")
    a(f"v_lshl_add_u32 {v(t[6])}, {v(t[5])}, 8, {v(t[6])}")
    a(f"v_lshl_add_u32 {v(t[6])}, {v(t[3])}, 4, {v(t[6])}")
    a(f"v_add_u32 {v(t[6])}, {s(sAM0)}, {v(t[6])}")
    for ds in range(4):
        a(f"v_xor_b32 {v(t[7])}, {ds}, {v(t[5])}")
        a(f"v_lshl_add_u32 {v(QA+ds)}, {v(t[7])}, 6, {v(t[6])}")
    a(f"v_mul_u32_u24 {v(t[6])}, 272, {v(t[1])}")
    a(f"v_lshl_add_u32 {v(t[6])}, {v(t[3])}, 3, {v(t[6])}")
    a(f"v_add_u32 {v(OWA)}, {s(sPRIV)}, {v(t[6])}")
    a(f"v_mul_u32_u24 {v(t[6])}, 272, {v(t[3])}")
    a(f"v_lshl_add_u32 {v(t[6])}, {v(t[1])}, 4, {v(t[6])}")
    a(f"v_add_u32 {v(ORA)}, {s(sPRIV)}, {v(t[6])}")
    a(f"v_lshlrev_b32 {v(t[6])}, 4, {v(t[1])}")
    a(f"v_lshl_add_u32 {v(GO)}, {v(t[3])}, 12, {v(t[6])}")
    a(f"s_bitcmp1_b32 {s(sD+1)}, 14")
    a("s_cbranch_scc1 L_first3")

    for c in CS:
        a.label(f"L_first{c}")
        vm = VM()
        vm.issue("Q0", 4); vm.issue("K0", 2); vm.issue("Q1", 4); vm.issue("E0", 4)
        job_setup(c)
        zero_acc(c)
        a(f"s_waitcnt vmcnt({vm.need('Q0')})")
        stamp(2)
        read_q(c, 0)
        if c == 3:
            a(f"s_add_u32 m0, {s(sAM0)}, {8*QP}")
            a("s_nop 0")
            for p in range(4):
                a(aux_dma())
                a(f"s_add_u32 m0, m0, {QP}")
                a(f"s_add_u32 {s(sAOFF)}, {s(sAOFF)}, {4*4096}")
            vm.issue("Q2", 4)
        a("s_waitcnt lgkmcnt(0)")
        scale_q(c, 0)
        a(f"s_waitcnt vmcnt({vm.need('Q1')})")
        a("s_barrier")
        read_q(c, 1)
        for f in range(8):
            a(kread(f, KA, 0))
        a(f"s_mov_b32 m0, {s(sM0+2)}")
        a("s_nop 0")
        a.extend(ring_dmas())
        vm.issue("E1", 4)
        a.extend(ring_adv())
        a("s_waitcnt lgkmcnt(8)")
        scale_q(c, 1)
        a("s_waitcnt lgkmcnt(0)")
        for f in range(8):
            a(qk(c, 0, f))
        a(f"s_waitcnt vmcnt({vm.need('E0')})")
        a("s_barrier")
        pro_tail(c, VA, 1)
        if c == 3:
            a(f"s_waitcnt vmcnt({vm.need('Q2')})")
            read_q(c, 2)
        q_setup(sD + 2)
        a(f"s_mov_b32 m0, {s(sAM0)}")
        a("s_waitcnt lgkmcnt(0)")
        a(aux_dma())
        a(f"s_mov_b32 m0, {s(sM0+3)}")
        a.extend(aux_adv())
        a.extend(ring_dmas())
        a.extend(ring_adv())
        if c == 3:
            scale_q(c, 2)
        stamp((4,))
        stamp((5,), True)
        a(f"s_branch L_body{c}_2")

        a.label(f"L_pro{c}")
        for u in range(c):
            read_q(c, u)
        a(f"s_add_u32 {s(sT+4)}, {s(sPH)}, {3*16384}")
        a(f"s_and_b32 {s(sT+4)}, {s(sT+4)}, 0xffff")
        for ds in range(4):
            a(f"v_add_u32 {v(TA+ds)}, {s(sT+4)}, {v(KA+ds)}")
        zero_acc(c)
        for f in range(8):
            a(kread(f, TA, 0))
        for dt in range(8):
            a(f"v_add_u32 {v(TA+4+dt)}, {s(sPH)}, {v(VA+dt)}")
        job_setup(c)
        q_setup(sD + 2)
        k_state(sD + 2, sNX, sNREC)
        a(f"s_mov_b32 m0, {s(sAM0)}")
        a(f"s_xor_b32 {s(sT+4)}, {s(sPH)}, {2*16384}")
        a("s_waitcnt lgkmcnt(8)")
        a(aux_dma())
        a(f"s_add_u32 m0, {s(sT+4)}, {s(sWB)}")
        a.extend(aux_adv())
        a.extend(ring_dmas())
        a.extend(ring_adv())
        for u in range(c):
            scale_q(c, u)
        a("s_waitcnt lgkmcnt(0)")
        a("s_barrier")
        for f in range(8):
            a(qk(c, 0, f))
        pro_tail(c, TA + 4, 0)
        stamp((4,))
        stamp((5,), True)
        a(f"s_bitcmp1_b32 {s(sPH)}, 14")
        a(f"s_cbranch_scc1 L_pro{c}_odd")
        a(f"s_bitcmp1_b32 {s(sPH)}, 15")
        a(f"s_cbranch_scc1 L_body{c}_3")
        a(f"s_branch L_body{c}_1")
        a.label(f"L_pro{c}_odd")
        a(f"s_bitcmp1_b32 {s(sPH)}, 15")
        a(f"s_cbranch_scc0 L_body{c}_2")
        for p in range(4):
            body(c, p)
        a.label(f"L_last{c}")
        stamp((6,))
        stamp((7,), True)
        slots = []
        if c == 3:
            slots += window(c, 0, 2, MASK, first=True)
            it = sm_items(c, 1)
            it.update(z=[(ex(c, 2, 0), None)])
            put(slots, 0, ["-", "e", "-", "e", "c", "e", "-", "e", "c", "e", "-", "e", "c", "e", "e", "c", "z"], it)
            b0 = len(slots)
            slots += window(c, 1, None, MASK)
            it = sm_items(c, 2, skip0=True)
            put(slots, b0, ["e", "e", "e", "cc", "e", "e", "e", "e", "cc"], it)
        else:
            slots += window(c, 0, None, MASK, first=True)
            it = sm_items(c, 1)
            put(slots, 0, ["e", "e", "e", "ec", "ec", "e", "e", "e", "cc"], it)
        slots[-1].fill.append(("s_nop 1", None))
        slots += window(c, c - 1, None, MASK)
        emit(slots, vpend, [])
        stamp((8,))

        def stores(u):
            for tt in range(4):
                a(f"s_add_u32 {s(sT)}, {s(sQROW)}, {(16*u+4*tt)*4096}")
                a(f"buffer_store_dwordx4 {ar(RB+16*u+4*tt,4)}, {v(GO)}, {s(SRO,4)}, {s(sT)} offen {ST}")

        for u in range(c):
            a(f"v_rcp_f32 {v(T)}, {v(RL(c,u))}")
            a(f"v_subrev_u32 {v(T+2)}, {s(sLO)}, {v(RL(c,u))}")
            a(f"v_cmp_le_u32 vcc, {s(sRNG)}, {v(T+2)}")
            a(f"s_or_b64 {s(sACC,2)}, {s(sACC,2)}, vcc")
            for dt in range(8):
                r = RO(c, u, dt)
                a(f"v_pk_mul_f32 {v(r,2)}, {v(r,2)}, {v(T,2)} op_sel_hi:[1,0]")
                a(f"v_pk_mul_f32 {v(r+2,2)}, {v(r+2,2)}, {v(T,2)} op_sel_hi:[1,0]")
                a(cvt(r, r))
                a(cvt(r + 1, r + 2))
            if u > 0:
                a("s_waitcnt lgkmcnt(0)")
                stores(u - 1)
            for dt in range(8):
                a(f"ds_write_b64 {v(OWA)}, {v(RO(c,u,dt),2)} offset:{32*dt}")
            for tt in range(4):
                a(f"ds_read_b128 {ar(RB+16*u+4*tt,4)}, {v(ORA)} offset:{tt*4*272}")
        a(f"s_cmp_lg_u64 {s(sACC,2)}, 0")
        a(f"s_cselect_b32 {s(sT+1)}, 1, 0")
        a(f"s_lshl_b32 {s(sT+1)}, {s(sT+1)}, {s(sJIDX)}")
        a(f"s_or_b32 {s(sFAIL)}, {s(sFAIL)}, {s(sT+1)}")
        for k in range(0, 2 * MAXJ, 2):
            a(f"s_mov_b64 {s(sD+k,2)}, {s(sD+k+2,2)}")
        a("s_waitcnt lgkmcnt(0)")
        stores(c - 1)
        stamp((9,))
        a(f"s_add_u32 {s(sJIDX)}, {s(sJIDX)}, 1")
        a(f"s_cmp_eq_u32 {s(sD+1)}, 0")
        a("s_cbranch_scc1 L_done")
        a(f"s_waitcnt vmcnt({4+4*c})")
        a(f"s_bitcmp1_b32 {s(sD+1)}, 14")
        a("s_cbranch_scc1 L_pro3")
        a("s_branch L_pro2")

    a.label("L_done")
    if o.stamp:
        a("s_waitcnt vmcnt(0)")
        stamp(3)
        stamp(28, True)
        a(f"s_getreg_b32 {s(sTS)}, hwreg(HW_REG_HW_ID)")
        a(f"v_writelane_b32 {v(STAMP)}, {s(sTS)}, 29")
        a(f"s_getreg_b32 {s(sTS)}, hwreg(HW_REG_XCC_ID)")
        a(f"v_writelane_b32 {v(STAMP)}, {s(sTS)}, 30")
        a("s_load_dwordx2 s[96:97], s[0:1], 48")
        a("s_mov_b32 s98, 0x100000")
        a("s_mov_b32 s99, 0x20000")
        a(f"s_lshl_b32 {s(sT)}, s2, 2")
        a(f"s_add_u32 {s(sT)}, {s(sT)}, {s(sW)}")
        a(f"s_lshl_b32 {s(sT)}, {s(sT)}, 7")
        a(f"v_and_b32 v253, 63, {v(TID)}")
        a("v_lshlrev_b32 v253, 2, v253")
        a("s_waitcnt lgkmcnt(0)")
        a("s_mov_b64 exec, 0xffffffff")
        a(f"buffer_store_dword {v(STAMP)}, v253, s[96:99], {s(sT)} offen")
        a("s_mov_b64 exec, -1")
    a(f"s_cmp_lg_u32 {s(sFAIL)}, 0")
    a("s_cbranch_scc1 L_slow")
    a.label("L_end")
    a("s_endpgm")

    c = 2
    SM, NI = RS(c, 1), RS(c, 1) + 1
    SV = RO(c, 1, 0)
    sU, sNT, sTI, sREM, sPASS = sL, sL + 1, sL + 2, sL + 3, sL + 4
    a.label("L_slow")
    a("s_waitcnt vmcnt(0)")
    a(f"s_add_u32 {s(SRK)}, {s(SRK)}, 2048")
    a(f"s_addc_u32 {s(SRK+1)}, {s(SRK+1)}, 0")
    a(f"s_add_u32 {s(sT)}, {s(sPRIV)}, {QOFF}")
    for k in range(12):
        a(f"v_add_u32 {v(TA+k)}, {s(sT)}, {v(KA+k)}")
    a(f"v_and_b32 {v(t[1])}, 15, {v(TID)}")
    a(f"v_bfe_u32 {v(t[3])}, {v(TID)}, 4, 2")
    for w in range(4):
        a(f"v_add_u32 {v(t[2])}, {4*w}, {v(t[3])}")
        a(f"v_and_b32 {v(t[4])}, 7, {v(t[2])}")
        a(f"v_lshlrev_b32 {v(t[4])}, 1, {v(t[4])}")
        a(f"v_xor_b32 {v(t[4])}, {v(t[4])}, {v(t[1])}")
        a(f"v_lshlrev_b32 {v(t[4])}, 4, {v(t[4])}")
        a(f"v_lshl_add_u32 {v(SV+4*w)}, {v(t[2])}, 12, {v(t[4])}")
        a(f"v_add_u32 {v(SV+4*w+1)}, 65536, {v(SV+4*w)}")
        a(f"v_xor_b32 {v(t[4])}, {v(t[2])}, {v(t[1])}")
        a(f"v_lshlrev_b32 {v(t[4])}, 4, {v(t[4])}")
        a(f"v_lshl_add_u32 {v(SV+4*w+2)}, {v(t[2])}, 12, {v(t[4])}")
        a(f"v_add_u32 {v(SV+4*w+3)}, 65536, {v(SV+4*w+2)}")
    QG = SV + 16
    a(f"v_lshlrev_b32 {v(QG)}, 4, {v(t[3])}")
    a(f"v_lshl_add_u32 {v(QG)}, {v(t[1])}, 12, {v(QG)}")
    a(f"v_mov_b32 {v(NI)}, 0xff800000")
    a.label("L_slow_job")
    a(f"s_bitcmp1_b32 {s(sFAIL)}, 0")
    a("s_cbranch_scc0 L_slow_next")
    a(f"s_and_b32 {s(sT)}, {s(sD0+1)}, 0x1ff")
    a(f"s_lshl_b32 {s(sT+1)}, {s(sT)}, 12")
    a(f"s_add_u32 {s(sT+1)}, {s(sT+1)}, {s(sD0)}")
    for srd in (SRQ, SRK, SRV, SRO):
        a(f"s_sub_u32 {s(srd+2)}, {s(sT+1)}, {4096-256}")
    a(f"s_mov_b32 {s(sNT)}, {s(sT)}")
    a(f"s_bfe_u32 {s(sU)}, {s(sD0+1)}, {14 | (3 << 16)}")
    a(f"s_bfe_u32 {s(sT+1)}, {s(sD0+1)}, {9 | (5 << 16)}")
    a(f"s_mul_i32 {s(sT+2)}, {s(sU)}, {s(sW)}")
    a(f"s_add_u32 {s(sT+1)}, {s(sT+1)}, {s(sT+2)}")
    a(f"s_lshl_b32 {s(sQROW)}, {s(sT+1)}, 16")
    a(f"s_add_u32 {s(sQROW)}, {s(sQROW)}, {s(sD0)}")
    a.label("L_slow_sub")
    for ds in range(4):
        a(f"buffer_load_dwordx4 {v(RQ(c,0)+4*ds,4)}, {v(QG)}, {s(SRQ,4)}, {s(sQROW)} offen offset:{64*ds}")
    for r in range(32):
        a(f"v_mov_b32 {v(RO(c,0,0)+r)}, 0")
    for r in range(4):
        a(f"v_mov_b32 {v(RL(c,0)+r)}, 0")
    a(f"v_mov_b32 {v(SM)}, {v(NI)}")
    a("s_waitcnt vmcnt(0)")
    scale_q(c, 0)
    a(f"s_mov_b32 {s(sPASS)}, 0")
    a.label("L_slow_pass")
    a(f"s_mov_b32 {s(sTI)}, {s(sD0)}")
    a(f"s_mov_b32 {s(sREM)}, {s(sNT)}")
    a.label("L_slow_tile")
    a(f"s_add_u32 m0, {s(sPRIV)}, {QOFF}")
    a("s_nop 0")
    for k in range(16):
        a(dma(SV + k, SRV if k % 4 < 2 else SRK, s(sTI), 0, ""))
        a("s_add_u32 m0, m0, 1024")
        a("s_nop 0")
    a("s_waitcnt vmcnt(0)")
    for f in range(8):
        a(kread(f, TA, 0))
    a("s_waitcnt lgkmcnt(0)")
    for dt in range(8):
        for hb in range(2):
            a(vread(dt, hb, TA + 4, 0))
        if dt == 3:
            a("s_waitcnt lgkmcnt(0)")
    for f in range(8):
        a(qk(c, 0, f))
    a(f"v_sub_u32 {v(T)}, {s(sREM)}, {v(G4)}")
    a("s_nop 7")
    for r in range(8):
        a(f"v_cmp_lt_i32 vcc, {16*(r//4)+r%4}, {v(T)}")
        a("s_nop 1")
        a(f"v_cndmask_b32 {v(RS(c,0)+r)}, {v(NI)}, {v(RS(c,0)+r)}, vcc")
    a("s_waitcnt lgkmcnt(0)")
    a(f"s_cmp_eq_u32 {s(sPASS)}, 1")
    a("s_cbranch_scc1 L_slow_p2")
    for r in range(0, 8, 2):
        a(f"v_max3_f32 {v(SM)}, {v(SM)}, {v(RS(c,0)+r)}, {v(RS(c,0)+r+1)}")
    a("s_branch L_slow_adv")
    a.label("L_slow_p2")
    for r in range(8):
        a(f"v_sub_f32 {v(RS(c,0)+r)}, {v(RS(c,0)+r)}, {v(SM)}")
    for r in range(8):
        a(ex(c, 0, r))
    a("s_nop 0")
    for k in range(4):
        a(cv(c, 0, k))
    a("s_nop 1")
    for dt in range(8):
        a(pv(c, 0, dt))
    a(rs(c, 0, ONES))
    a.label("L_slow_adv")
    a(f"s_add_u32 {s(sTI)}, {s(sTI)}, {TILE}")
    a(f"s_sub_u32 {s(sREM)}, {s(sREM)}, 32")
    a(f"s_cmp_gt_i32 {s(sREM)}, 0")
    a("s_cbranch_scc1 L_slow_tile")
    a(f"s_cmp_eq_u32 {s(sPASS)}, 1")
    a("s_cbranch_scc1 L_slow_out")
    for sw in ("v_permlane32_swap_b32", "v_permlane16_swap_b32"):
        a(f"v_mov_b32 {v(T)}, {v(SM)}")
        a("s_nop 1")
        a(f"{sw} {v(SM)}, {v(T)}")
        a("s_nop 1")
        a(f"v_max_f32 {v(SM)}, {v(SM)}, {v(T)}")
    a(f"s_mov_b32 {s(sPASS)}, 1")
    a("s_branch L_slow_pass")
    a.label("L_slow_out")
    a("s_nop 7")
    a(f"v_rcp_f32 {v(T)}, {v(RL(c,0))}")
    a("s_nop 0")
    for dt in range(8):
        r = RO(c, 0, dt)
        for k in range(4):
            a(f"v_mul_f32 {v(r+k)}, {v(r+k)}, {v(T)}")
        a(cvt(r, r))
        a(cvt(r + 1, r + 2))
        a(f"ds_write_b64 {v(OWA)}, {v(r,2)} offset:{32*dt}")
    for tt in range(4):
        a(f"ds_read_b128 {ar(RB+4*tt,4)}, {v(ORA)} offset:{tt*4*272}")
    a("s_waitcnt lgkmcnt(0)")
    for tt in range(4):
        a(f"s_add_u32 {s(sT)}, {s(sQROW)}, {4*tt*4096}")
        a(f"buffer_store_dwordx4 {ar(RB+4*tt,4)}, {v(GO)}, {s(SRO,4)}, {s(sT)} offen {ST}")
    a("s_waitcnt vmcnt(0)")
    a(f"s_add_u32 {s(sQROW)}, {s(sQROW)}, 65536")
    a(f"s_sub_u32 {s(sU)}, {s(sU)}, 1")
    a(f"s_cmp_lg_u32 {s(sU)}, 0")
    a("s_cbranch_scc1 L_slow_sub")
    a.label("L_slow_next")
    for k in range(0, 2 * MAXJ - 2, 2):
        a(f"s_mov_b64 {s(sD0+k,2)}, {s(sD0+k+2,2)}")
    a(f"s_lshr_b32 {s(sFAIL)}, {s(sFAIL)}, 1")
    a(f"s_cmp_lg_u32 {s(sFAIL)}, 0")
    a("s_cbranch_scc1 L_slow_job")
    a("s_endpgm")

    bad = check_cfg(a.lines)
    for x in bad:
        print("HAZARD", x, file=sys.stderr)

    tab = []
    for jobs in plan:
        for i in range(MAXJ):
            if i < len(jobs):
                sq, hs, q, cc = jobs[i]
                L = CU[sq + 1] - CU[sq]
                tab += [CU[sq] * 4096 + hs * 256, L | (q << 9) | (cc << 14) | ((sq & 7) << 17)]
            else:
                tab += [0, 0]
    out = HEADER
    out += f"; @launch grid=({NWG},1,1) block=(256,1,1) lds=163840\n"
    out += f""".amdgcn_target "amdgcn-amd-amdhsa--gfx950"
.text
.globl {NAME}_kernel
.p2align 8
.type {NAME}_kernel,@function
{NAME}_kernel:
"""
    out += a.text()
    out += ".p2align 7\n.type L_table,@object\nL_table:\n"
    for x in tab:
        out += f".long 0x{x:08x}\n"
    out += f""".size L_table, {4*len(tab)}
.section .rodata,"a"
.p2align 6
.amdhsa_kernel {NAME}_kernel
  .amdhsa_next_free_vgpr 384
  .amdhsa_next_free_sgpr 102
  .amdhsa_accum_offset 256
  .amdhsa_group_segment_fixed_size 0
  .amdhsa_kernarg_size 56
  .amdhsa_user_sgpr_count 2
  .amdhsa_user_sgpr_kernarg_segment_ptr 1
  .amdhsa_system_sgpr_workgroup_id_x 1
.end_amdhsa_kernel
"""
    return out


if __name__ == "__main__":
    ap = argparse.ArgumentParser()
    ap.add_argument("-o", default="cdna_kernels/%s.s" % NAME)
    ap.add_argument("--plan", default="")
    ap.add_argument("--nocheck", action="store_true")
    ap.add_argument("--ld", default="")
    ap.add_argument("--ldq", default="")
    ap.add_argument("--st", default="sc1")
    ap.add_argument("--stamp", action="store_true")
    ap.add_argument("--wa2", default="dd e dd e dc e dd e dxc e gg e gc e e gc z")
    o = ap.parse_args()
    open(o.o, "w").write(gen(o))
```

```python
import sys, math, struct, argparse, json, copy
from asmlib import Asm, v, s, check_cfg

NAME = "standalone__varlen_attn_packed__ragged"
CU = [0, 205, 520, 906, 1211, 1583, 1912, 2114, 2429, 2893, 2977, 3099, 3593, 3692, 4133, 4346, 4464]
HEADER = open("cdna_kernels/%s.s.ref" % NAME).read().split("; Override")[0]
MAXJ = 3


def f32(x):
    return "0x%08x" % struct.unpack("<I", struct.pack("<f", x))[0]


def ar(a, n=1):
    return f"a{a}" if n == 1 else f"a[{a}:{a + n - 1}]"


def check_plan(plan, R, xaux):
    cover = {}
    assert len(plan) == 256
    for jobs in plan:
        assert 1 <= len(jobs) <= MAXJ
        for i, (sq, h, q, c) in enumerate(jobs):
            for x in range(q, q + 4 * c):
                assert (sq, h, x) not in cover
                cover[(sq, h, x)] = 1
            n = (CU[sq + 1] - CU[sq] + 31) // 32
            if i + 1 < len(jobs):
                slots = n - 2 + (xaux if i == 0 else 0)
                assert slots >= 4 * jobs[i + 1][3], ("aux capacity", jobs)
                assert i == 0 or n >= R, ("K stream look-ahead", jobs)
    for sq in range(16):
        for h in range(16):
            for x in range((CU[sq + 1] - CU[sq] + 15) // 16):
                assert (sq, h, x) in cover, (sq, h, x)


def table(plan):
    tab = []
    for jobs in plan:
        for i in range(4):
            if i < len(jobs):
                sq, h, q, c = jobs[i]
                L = CU[sq + 1] - CU[sq]
                n = (L + 31) // 32
                base = CU[sq] * 4096 + h * 256
                kend = base + n * 131072
                nrec = base + L * 4096 - 3840
                tab += [base, kend, base + q * 65536,
                        (kend - nrec) | ((n - 2) << 17) | ((L - 32 * (n - 1)) << 21) | (c << 28)]
            else:
                tab += [0, 0, 0, 0]
    return tab


class Q:
    def __init__(self, init=()):
        self.q = list(init)

    def issue(self, tag, n=1):
        self.q += [tag] * n

    def need(self, tag):
        last = max(i for i, t in enumerate(self.q) if t == tag)
        return len(self.q) - 1 - last


def gen(o):
    a = Asm()
    plan = json.load(open(o.plan))
    R = o.ring
    if not o.nocheck:
        check_plan(plan, R, o.xaux)
    NWG = len(plan)
    LD, LDQ, ST = o.ld, o.ldq, o.st
    CS = [2, 3]
    TILE = 131072
    def RO(u, dt=0): return 32 * u + 4 * dt
    def RL(u): return 96 + 4 * u
    def RS(u): return 108 + 8 * u
    def RP(u): return 132 + 4 * u
    def RQ(u): return 144 + 16 * u
    ONES, MASK, KA, VA = 192, 196, 200, 204
    DV0, DV1, DK0, DK1, DQ = 212, 213, 214, 215, 216
    QA, OWA, ORA, GO = 217, 221, 222, 223
    ZERO = 224
    TA = 228
    T = 240
    TID, G4 = 248, 249
    INV = 250
    STAMP = 252
    CK = 254
    KF, VF, RB = 0, 32, 64
    SRQ, SRK, SRV, SRO = 12, 16, 20, 24
    sW, sWB, sPRIV = 28, 29, 30
    sVOFF, sKOFF, sKEND, sNREC = 31, 32, 33, 34
    sAOFF, sAM0, sAMAX = 35, 36, 37
    sCNT, sPH, sFAIL, sJBIT = 38, 39, 40, 41
    sPH1, sPH2, sST, sREM = 42, 43, 44, 45
    sC = 46
    sACC = 48
    sQROW, sONREC = 50, 53
    sLO, sRNG = 51, 52
    sT = 54
    sD = 64
    sNX = 80
    sNPK, sNQROW, sCPK = 82, 83, 84
    sL = 86
    sTAB = 90
    sTS = 92
    sJIDX = 95
    VR = 8192 * R
    PRIV = 16384 * R
    PRIVSZ = (163840 - PRIV) // 4
    QP = 1056
    OBUF = [13 * QP, 0]
    assert OBUF[0] + 4352 <= PRIVSZ and PRIVSZ % 256 == 0 and PRIVSZ >= 16384

    def mf(d, x, y, c):
        return f"v_mfma_f32_16x16x32_bf16 {d}, {x}, {y}, {c}"

    def qk(u, f):
        kb, ds = f // 4, f % 4
        d = v(RS(u) + 4 * kb, 4)
        return mf(d, ar(KF + 4 * f, 4), v(RQ(u) + 4 * ds, 4), "0" if ds == 0 else d)

    def pv(u, dt):
        d = v(RO(u, dt), 4)
        return mf(d, ar(VF + 4 * dt, 4), v(RP(u), 4), d)

    def rs(u, ones):
        d = v(RL(u), 4)
        return mf(d, v(ones, 4), v(RP(u), 4), d)

    def zero16(r):
        return f"v_mfma_f32_32x32x16_bf16 {v(r,16)}, {v(ZERO,4)}, {v(ZERO,4)}, 0"

    def dma(vo, srd, so, off, fl):
        return f"buffer_load_dwordx4 {v(vo)}, {s(srd,4)}, {so} offen offset:{off} {fl} lds"

    def ring_dmas():
        return [dma(DV0, SRV, s(sVOFF), 0, LD), dma(DV1, SRV, s(sVOFF), 1024, LD),
                dma(DK0, SRK, s(sKOFF), 0, LD), dma(DK1, SRK, s(sKOFF), 1024, LD)]

    def m0_v(stage): return f"s_add_u32 m0, {s(sWB)}, {VR + stage*8192}"
    def m0_k(stage): return f"s_add_u32 m0, {s(sWB)}, {stage*8192}"

    def elem(stage, adv):
        g = ring_dmas()
        a(m0_v(stage))
        a("s_nop 0")
        a.extend(g[:2])
        a(m0_k(stage))
        a("s_nop 0")
        a.extend(g[2:])
        a.extend(adv)

    def aux_dma():
        return dma(DQ, SRQ, s(sAOFF), 0, LDQ)

    def aux_adv():
        return [f"s_add_u32 {s(sAOFF)}, {s(sAOFF)}, {4*4096}", f"s_add_u32 {s(sAM0)}, {s(sAM0)}, {QP}",
                f"s_min_u32 {s(sAM0)}, {s(sAM0)}, {s(sAMAX)}"]

    def ring_adv():
        return [f"s_mov_b32 {s(sVOFF)}, {s(sKOFF)}",
                f"s_mov_b32 {s(SRV+2)}, {s(SRK+2)}",
                f"s_add_u32 {s(sKOFF)}, {s(sKOFF)}, {TILE}",
                f"s_cmp_eq_u32 {s(sKOFF)}, {s(sKEND)}",
                f"s_cselect_b32 {s(SRK+2)}, {s(sNREC)}, {s(SRK+2)}",
                f"s_cselect_b64 {s(sKOFF,2)}, {s(sNX,2)}, {s(sKOFF,2)}"]

    def kread(f, base, stage):
        kb, ds = f // 4, f % 4
        return f"ds_read_b128 {ar(KF+4*f,4)}, {v(base+ds)} offset:{stage*8192+kb*1024}"

    def vread(dt, hb, base, stage):
        return f"ds_read_b64_tr_b16 {ar(VF+4*dt+2*hb,2)}, {v(base+dt)} offset:{stage*8192+hb*1024}"

    def qread(u, ds):
        return f"ds_read_b128 {v(RQ(u)+4*ds,4)}, {v(QA+ds)} offset:{u*4*QP}"

    def ex(u, r):
        return f"v_exp_f32 {v(RS(u)+r)}, {v(RS(u)+r)}"

    def cv(u, k):
        return f"v_cvt_pk_bf16_f32 {v(RP(u)+k)}, {v(RS(u)+2*k)}, {v(RS(u)+2*k+1)}"

    def cvt(d, r):
        return f"v_cvt_pk_bf16_f32 {v(d)}, {v(r)}, {v(r+1)}"

    def stamp(k, clk=False):
        if not o.stamp:
            return
        if o.light and (clk or k not in (0, 3, (4,), (9,))):
            return
        if o.clk:
            if clk:
                return
            clk = True
        a(f"{'s_memtime' if clk else 's_memrealtime'} {s(sTS,2)}")
        a("s_waitcnt lgkmcnt(0)")
        if isinstance(k, int):
            a(f"v_writelane_b32 {v(STAMP)}, {s(sTS)}, {k}")
        else:
            a(f"s_mul_i32 {s(sTS+1)}, {s(sJIDX)}, 6")
            a(f"s_add_u32 m0, {s(sTS+1)}, {k[0]}")
            a(f"v_writelane_b32 {v(STAMP)}, {s(sTS)}, m0")

    class Slot:
        def __init__(self, m, need=None):
            self.m = m
            self.need = need
            self.free = None
            self.fill = []

    def place_waits(slots, pending, D=5):
        q = list(pending)
        done = -1
        for i, sl in enumerate(slots):
            nxt = slots[i + 1].need if i + 1 < len(slots) else None
            if nxt is not None:
                idx = max(k for k, (t_, _) in enumerate(q) if t_ == nxt)
                if idx > done:
                    old = [k for k, (_, si) in enumerate(q) if si <= i - D]
                    idx = max([idx] + old)
                    n = len(q) - 1 - idx
                    assert n <= 15
                    w = f"lgkmcnt({n})"
                    if sl.free is not None:
                        assert sl.free.startswith("s_waitcnt"), sl.free
                        sl.free += " " + w
                    else:
                        sl.free = "s_waitcnt " + w
                    done = idx
            for (txt, tag) in sl.fill:
                if txt.startswith("ds_"):
                    q.append((tag, i))

    def pin_before(slots, lo, hi, txt):
        k = hi
        while slots[k].free is not None:
            k -= 1
        assert k > lo, ("no free position", txt)
        slots[k].free = txt

    def place_salu(slots, start, lst):
        pos = start
        lst = list(lst)
        while lst:
            while pos < len(slots) and slots[pos].free is not None:
                pos += 1
            if pos >= len(slots):
                break
            slots[pos].free = lst.pop(0)
        return lst

    def out(slots):
        for sl in slots:
            a(sl.m)
            if sl.free:
                a(sl.free)
            for (txt, _) in sl.fill:
                a(txt)

    def put(slots, base, layout, items):
        for i, l in enumerate(layout):
            for ch in l:
                if ch != "-":
                    slots[base + i].fill.append(items[ch].pop(0))

    def pin_m0(slots, lay, mx, mv, mk):
        seq = [(i, ch) for i, l in enumerate(lay) for ch in l if ch in "gx"]
        prev = -1
        ng = 0
        for (i, ch) in seq:
            txt = None
            if ch == "x":
                txt = mx
            else:
                txt = {0: mv, 2: mk}.get(ng)
                ng += 1
            if txt:
                pin_before(slots, prev, i - 1, txt)
            prev = i

    WB_LAY = o.wb.split()
    vpend = []
    k_ = 0
    for i_, l_ in enumerate(WB_LAY):
        for ch_ in l_:
            if ch_ == "t":
                vpend.append((f"V{k_//2}", i_ - 17))
                k_ += 1

    def window(upv, uqk, ones, first=False, kneed=False):
        sl = []
        if first:
            sl.append(Slot(rs(upv, ones)))
        for dt in range(8):
            sl.append(Slot(pv(upv, dt), f"V{dt}" if first else None))
        if not first:
            sl.append(Slot(rs(upv, ones)))
        if uqk is not None:
            for f in range(8):
                sl.append(Slot(qk(uqk, f), f"K{f}" if kneed else None))
        return sl

    def sm_items(u, skip0=False):
        return {"e": [(ex(u, r), None) for r in range(1 if skip0 else 0, 8)],
                "c": [(cv(u, k), None) for k in range(4)]}

    def body(c, p):
        a.label(f"L_body{c}_{p}")
        i0 = len(a.lines)
        slots = []
        shared = dict(g=[(x, None) for x in ring_dmas()], x=[(aux_dma(), None)],
                      d=[(kread(f, KA, (p - 1) % R), f"K{f}") for f in range(8)], z=[(ex(0, 0), None)])
        if c == 2:
            lay = o.wa2.split()
            slots += window(0, 0, ONES, first=True, kneed=True)
            put(slots, 0, lay, dict(sm_items(1), **shared))
        else:
            lay = o.w03.split() + o.w13.split()
            slots += window(0, 2, ONES, first=True)
            put(slots, 0, lay[:17], dict(sm_items(1), **shared))
            slots += window(1, 0, ONES, kneed=True)
            put(slots, 17, lay[17:], dict(sm_items(2), **shared))
        b0 = len(slots)
        slots += window(c - 1, 1, ONES)
        it = sm_items(0, skip0=True)
        it.update(t=[(vread(dt, hb, VA, p), f"V{dt}") for dt in range(8) for hb in range(2)])
        put(slots, b0, WB_LAY, it)
        slots[b0 - 1].free = f"s_waitcnt vmcnt({5*(R-2)})"
        slots[b0].free = "s_barrier"
        if o.steps:
            slots[b0].free = (f"s_barrier\ns_memrealtime {s(sTS,2)}\ns_mov_b32 m0, s94\ns_add_u32 s94, s94, 1\n"
                              f"s_waitcnt lgkmcnt(0)\nv_writelane_b32 {v(STAMP)}, {s(sTS)}, m0")
        place_waits(slots, vpend)
        st = (p - 2) % R
        pin_m0(slots, lay, f"s_mov_b32 m0, {s(sAM0)}", m0_v(st), m0_k(st))
        n = (p + 1) % R
        late = aux_adv() + ring_adv() + [f"s_mov_b32 {s(sPH)}, {n*8192}",
                                         f"s_mov_b32 {s(sPH1)}, {((n-1)%R)*8192}",
                                         f"s_mov_b32 {s(sPH2)}, {((n-2)%R)*8192}",
                                         f"s_sub_u32 {s(sCNT)}, {s(sCNT)}, 1"]
        assert not place_salu(slots, b0 + 1, late)
        out(slots)
        if o.drop:
            dr = o.drop.split(",")
            keep = []
            for x in a.lines[i0:]:
                if "bar" in dr and x.startswith("s_barrier"): continue
                if "dma" in dr and x.startswith("buffer_load"): continue
                if "aux" in dr and x.startswith(f"buffer_load_dwordx4 v{DQ}"): continue
                if "ds" in dr and x.startswith("ds_"): continue
                keep.append(x)
            a.lines[i0:] = keep
        if p == R - 1:
            a(f"s_cbranch_scc0 L_body{c}_0")
        else:
            a(f"s_cbranch_scc1 L_last{c}")

    def scale_q(u):
        r_ = []
        for r in range(16):
            q = RQ(u) + r
            x = T + (r % 2) * 2
            r_ += [f"v_lshlrev_b32 {v(x)}, 16, {v(q)}",
                   f"v_and_b32 {v(x+1)}, 0xffff0000, {v(q)}",
                   f"v_pk_mul_f32 {v(x,2)}, {v(x,2)}, {s(sC,2)}",
                   cvt(q, x)]
        return r_

    def k_state(d, off, nrec):
        return [f"s_and_b32 {s(sT)}, {s(d+3)}, 0x1ffff",
                f"s_sub_u32 {s(nrec)}, {s(d+1)}, {s(sT)}",
                f"s_mov_b64 {s(off,2)}, {s(d,2)}"]

    def q_setup(d, nrec):
        return [f"s_lshr_b32 {s(sT)}, {s(d+3)}, 28",
                f"s_lshl_b32 {s(sT)}, {s(sT)}, 16",
                f"s_mul_i32 {s(sT+1)}, {s(sT)}, {s(sW)}",
                f"s_add_u32 {s(sAOFF)}, {s(sT+1)}, {s(d+2)}",
                f"s_add_u32 {s(sT)}, {s(sT)}, {s(sAOFF)}",
                f"s_sub_u32 {s(sT)}, {s(sT)}, 3840",
                f"s_min_u32 {s(SRQ+2)}, {s(sT)}, {s(nrec)}"]

    def q_note(d):
        return [f"s_mov_b32 {s(sNQROW)}, {s(sAOFF)}", f"s_mov_b32 {s(sAM0)}, {s(sPRIV)}",
                f"s_mov_b32 {s(sNPK)}, {s(d+3)}"]

    def take_next():
        return [f"s_mov_b32 {s(sQROW)}, {s(sNQROW)}", f"s_mov_b32 {s(sONREC)}, {s(SRQ+2)}",
                f"s_mov_b32 {s(sCPK)}, {s(sNPK)}",
                f"s_bfe_u32 {s(sCNT)}, {s(sNPK)}, {17 | (4 << 16)}",
                f"s_bfe_u32 {s(sREM)}, {s(sNPK)}, {21 | (6 << 16)}"]

    def mask_valu():
        r_ = [f"v_sub_u32 {v(T+4)}, {s(sREM)}, {v(G4)}", f"v_lshlrev_b32 {v(T+4)}, 4, {v(T+4)}"]
        for jj in range(4):
            k0 = 16 * (jj >> 1) + 2 * (jj & 1)
            r_ += [f"v_subrev_u32 {v(T+5)}, {16*k0}, {v(T+4)}",
                   f"v_med3_i32 {v(T+5)}, {v(T+5)}, 0, 31",
                   f"v_bfe_u32 {v(MASK+jj)}, {v(ONES)}, 0, {v(T+5)}"]
        return r_

    def norm_head(u):
        return [f"v_rcp_f32 {v(INV)}, {v(RL(u))}",
                f"v_subrev_u32 {v(CK)}, {s(sLO)}, {v(RL(u))}",
                f"v_cmp_le_u32 vcc, {s(sRNG)}, {v(CK)}"]

    def norm_pair(u, k):
        r_ = []
        for dt in (2 * k, 2 * k + 1):
            r = RO(u, dt)
            r_ += [f"v_pk_mul_f32 {v(r,2)}, {v(r,2)}, {v(INV,2)} op_sel_hi:[1,0]",
                   f"v_pk_mul_f32 {v(r+2,2)}, {v(r+2,2)}, {v(INV,2)} op_sel_hi:[1,0]",
                   cvt(r, r), cvt(r + 1, r + 2)]
        return r_

    def owrite(u, dt, buf):
        return f"ds_write_b64 {v(OWA)}, {v(RO(u,dt),2)} offset:{OBUF[buf]+32*dt}"

    def oread(rb, tt, buf):
        return f"ds_read_b128 {ar(RB+4*rb,4)}, {v(ORA)} offset:{OBUF[buf]+tt*4*272}"

    def ostore(rb):
        return f"buffer_store_dwordx4 {ar(RB+4*rb,4)}, {v(GO)}, {s(SRO,4)}, {s(sST)} offen {ST}"

    ST_ADV = f"s_add_u32 {s(sST)}, {s(sST)}, {4*4096}"
    ACC_OR = f"s_or_b64 {s(sACC,2)}, {s(sACC,2)}, vcc"

    def note_fail():
        return [f"s_cmp_lg_u64 {s(sACC,2)}, 0",
                f"s_cselect_b32 {s(sT+3)}, {s(sJBIT)}, 0",
                f"s_or_b32 {s(sFAIL)}, {s(sFAIL)}, {s(sT+3)}"]

    a(f"s_cmp_ge_u32 s2, {NWG}")
    a("s_cbranch_scc1 L_end")
    if o.stamp:
        a("s_memrealtime s[100:101]")
    a(f"s_load_dwordx2 {s(SRQ,2)}, s[0:1], 0")
    a(f"s_load_dwordx2 {s(SRK,2)}, s[0:1], 8")
    a(f"s_load_dwordx2 {s(SRV,2)}, s[0:1], 16")
    a(f"s_load_dwordx2 {s(SRO,2)}, s[0:1], 32")
    a(f"s_getpc_b64 {s(sT,2)}")
    a.label("L_pc")
    a(f"s_lshl_b32 {s(sTAB)}, s2, 6")
    a(f"s_add_u32 {s(sT+2)}, {s(sTAB)}, L_table-L_pc")
    a(f"s_load_dwordx16 {s(sD,16)}, {s(sT,2)}, {s(sT+2)}")
    a(f"v_mov_b32 {v(TID)}, v0")
    if o.pf:
        a("v_lshlrev_b32 v1, 7, v0")
        a("v_min_u32 v1, L_slow-L_pc, v1")
        a(f"global_load_dword {v(STAMP+1)}, v1, {s(sT,2)}")
    t = [T + i for i in range(8)]
    a(f"v_lshrrev_b32 {v(t[0])}, 6, v0")
    a(f"v_and_b32 {v(t[1])}, 15, v0")
    a(f"v_readfirstlane_b32 {s(sW)}, {v(t[0])}")
    a(f"v_lshrrev_b32 {v(t[2])}, 4, v0")
    a(f"v_and_b32 {v(t[3])}, 3, {v(t[2])}")
    a(f"v_lshlrev_b32 {v(G4)}, 2, {v(t[3])}")
    a(f"v_xor_b32 {v(t[4])}, {v(G4)}, {v(t[1])}")
    a(f"v_lshlrev_b32 {v(t[4])}, 4, {v(t[4])}")
    a(f"v_lshl_add_u32 {v(DQ)}, {v(t[3])}, 12, {v(t[4])}")
    a(f"v_xor_b32 {v(t[4])}, {v(t[2])}, {v(t[1])}")
    a(f"v_lshlrev_b32 {v(t[4])}, 4, {v(t[4])}")
    a(f"v_lshl_add_u32 {v(DK0)}, {v(t[2])}, 12, {v(t[4])}")
    a(f"v_add_u32 {v(DK1)}, {65536-1024}, {v(DK0)}")
    a(f"v_and_b32 {v(t[4])}, 7, {v(t[2])}")
    a(f"v_lshlrev_b32 {v(t[4])}, 1, {v(t[4])}")
    a(f"v_xor_b32 {v(t[4])}, {v(t[4])}, {v(t[1])}")
    a(f"v_lshlrev_b32 {v(t[4])}, 4, {v(t[4])}")
    a(f"v_lshl_add_u32 {v(DV0)}, {v(t[2])}, 12, {v(t[4])}")
    a(f"v_add_u32 {v(DV1)}, {65536-1024}, {v(DV0)}")
    a(f"s_lshl_b32 {s(sWB)}, {s(sW)}, 11")
    a(f"s_mul_i32 {s(sPRIV)}, {s(sW)}, {PRIVSZ}")
    a(f"s_add_u32 {s(sPRIV)}, {s(sPRIV)}, {PRIV}")
    a(f"s_add_u32 {s(sAMAX)}, {s(sPRIV)}, {12*QP}")
    for srd in (SRQ, SRK, SRV, SRO):
        a(f"s_mov_b32 {s(srd+3)}, 0x20000")
    a(f"s_mov_b32 m0, {s(sPRIV)}")
    a(f"v_lshrrev_b32 {v(t[4])}, 2, {v(t[1])}")
    a(f"v_and_b32 {v(t[5])}, 3, {v(t[1])}")
    a(f"v_xor_b32 {v(t[6])}, {v(t[3])}, {v(t[1])}")
    a(f"v_lshlrev_b32 {v(t[6])}, 4, {v(t[6])}")
    a(f"v_lshl_add_u32 {v(t[6])}, {v(t[4])}, 11, {v(t[6])}")
    a(f"v_lshl_add_u32 {v(KA)}, {v(t[5])}, 8, {v(t[6])}")
    for ds in range(1, 4):
        a(f"v_xor_b32 {v(KA+ds)}, {64*ds}, {v(KA)}")
    a(f"v_and_b32 {v(t[6])}, 4, {v(G4)}")
    a(f"v_add_u32 {v(t[6])}, {v(t[6])}, {v(t[4])}")
    a(f"v_lshlrev_b32 {v(t[6])}, 5, {v(t[6])}")
    a(f"v_lshl_add_u32 {v(t[6])}, {v(t[5])}, 3, {v(t[6])}")
    a(f"v_lshl_add_u32 {v(t[6])}, {v(t[4])}, 8, {v(t[6])}")
    a(f"v_lshl_add_u32 {v(t[6])}, {v(t[3])}, 11, {v(t[6])}")
    a(f"v_add_u32 {v(VA)}, {VR}, {v(t[6])}")
    for dt in range(1, 8):
        a(f"v_xor_b32 {v(VA+dt)}, {32*dt}, {v(VA)}")
    if o.stamp:
        a(f"v_mov_b32 {v(STAMP)}, 0")
        a("s_mov_b32 s94, 32")
        a(f"s_mov_b32 {s(sJIDX)}, 0")
    a("s_waitcnt lgkmcnt(0)")
    if o.stamp:
        a(f"v_writelane_b32 {v(STAMP)}, s100, 31")
        stamp(0)
        stamp(1, True)
    a.extend(k_state(sD, sKOFF, SRK + 2))
    a.extend(q_setup(sD, SRK + 2))
    a(f"s_mov_b32 {s(sNQROW)}, {s(sAOFF)}")

    def q_sub():
        for p in range(4):
            a(aux_dma())
            a(f"s_add_u32 m0, m0, {QP}")
            a(f"s_add_u32 {s(sAOFF)}, {s(sAOFF)}, {4*4096}")

    q_sub()
    a(m0_k(0))
    a("s_nop 0")
    a.extend(ring_dmas()[2:])
    a(f"s_add_u32 m0, {s(sPRIV)}, {4*QP}")
    a.extend(ring_adv()[:3])
    q_sub()
    a(f"s_bitcmp0_b32 {s(sD+3)}, 28")
    a("s_cbranch_scc1 L_noq2")
    q_sub()
    a.label("L_noq2")
    elem(1, ring_adv()[:3])
    a(f"s_mov_b32 {s(sNPK)}, {s(sD+3)}")
    a.extend(take_next())
    a.extend(k_state(sD + 4, sNX, sNREC))
    a.extend(q_setup(sD + 4, sNREC))
    a.extend(q_note(sD + 4))
    a(f"s_mov_b32 {s(sFAIL)}, 0")
    a(f"s_mov_b32 {s(sJBIT)}, 1")
    cst = math.log2(math.e) / math.sqrt(128.0)
    a(f"s_mov_b32 {s(sC)}, {f32(cst)}")
    a(f"s_mov_b32 {s(sC+1)}, {f32(cst)}")
    lo_bits = struct.unpack("<I", struct.pack("<f", 2.0 ** -60))[0]
    hi_bits = struct.unpack("<I", struct.pack("<f", 2.0 ** 80))[0]
    a(f"s_mov_b32 {s(sLO)}, {lo_bits}")
    a(f"s_mov_b32 {s(sRNG)}, {hi_bits-lo_bits}")
    for k in range(4):
        a(f"v_mov_b32 {v(ZERO+k)}, 0")
    for k in range(4):
        a(f"v_mov_b32 {v(ONES+k)}, 0x3f803f80")
    setup = []
    setup += [f"v_mul_u32_u24 {v(t[6])}, {QP}, {v(t[4])}",
              f"v_lshl_add_u32 {v(t[6])}, {v(t[5])}, 8, {v(t[6])}",
              f"v_lshl_add_u32 {v(t[6])}, {v(t[3])}, 4, {v(t[6])}",
              f"v_add_u32 {v(t[6])}, {s(sPRIV)}, {v(t[6])}"]
    for ds in range(4):
        setup += [f"v_xor_b32 {v(t[7])}, {ds}, {v(t[5])}",
                  f"v_lshl_add_u32 {v(QA+ds)}, {v(t[7])}, 6, {v(t[6])}"]
    setup += [f"v_mul_u32_u24 {v(t[6])}, 272, {v(t[1])}",
              f"v_lshl_add_u32 {v(t[6])}, {v(t[3])}, 3, {v(t[6])}",
              f"v_add_u32 {v(OWA)}, {s(sPRIV)}, {v(t[6])}",
              f"v_mul_u32_u24 {v(t[6])}, 272, {v(t[3])}",
              f"v_lshl_add_u32 {v(t[6])}, {v(t[1])}, 4, {v(t[6])}",
              f"v_add_u32 {v(ORA)}, {s(sPRIV)}, {v(t[6])}",
              f"v_lshlrev_b32 {v(t[6])}, 4, {v(t[1])}",
              f"v_lshl_add_u32 {v(GO)}, {v(t[3])}, 12, {v(t[6])}"]
    setup += mask_valu()
    setup += [f"v_mov_b32 {v(RL(u))}, 0" for u in range(3)]
    for r in range(0, 96, 16):
        a(zero16(r))
        a.extend(setup[:6])
        setup = setup[6:]
    a.extend(setup)
    a(f"s_bitcmp1_b32 {s(sCPK)}, 28")
    a("s_cbranch_scc1 L_first3")

    def qk_pair(mid=(), mid2={}):
        for f in range(8):
            a(qk(0, f))
            if f < len(mid):
                a.extend(mid[f])
        if sum(len(x) for x in mid[3:]) < 3:
            a("s_nop 2")
        for f in range(8):
            a(qk(1, f))
            a.extend(mid2.get(f, []))
            a(ex(0, f))
        a("s_nop 0")
        for k in range(4):
            a(cv(0, k))

    for c in CS:
        a.label(f"L_first{c}")
        vm = Q()
        vm.issue("Q0", 4); vm.issue("K0", 2); vm.issue("Q1", 4)
        if c == 3:
            vm.issue("Q2", 4)
        vm.issue("E0", 4)
        nxt = [2]

        def more():
            if nxt[0] < R - 1:
                elem(nxt[0], ring_adv())
                vm.issue(f"E{nxt[0]-1}", 4)
                nxt[0] += 1

        def hook(name):
            for ch in o.pfo:
                if ch == name:
                    more()

        def scale_in(u, behind):
            sq = scale_q(u)
            for k, x in enumerate(sq):
                if k % 16 == 0:
                    a(f"s_waitcnt lgkmcnt({behind + 3 - k // 16})")
                a(x)
                if k < o.ramp:
                    a("s_nop 0")

        a(f"s_waitcnt vmcnt({vm.need('Q0')})")
        stamp(2)
        for ds in range(4):
            a(qread(0, ds))
        scale_in(0, 0)
        hook("A")
        a(f"s_waitcnt vmcnt({vm.need('Q1')})")
        a("s_barrier")
        for ds in range(4):
            a(qread(1, ds))
        for f in range(8):
            a(kread(f, KA, 0))
        scale_in(1, 8)
        a("s_waitcnt lgkmcnt(0)")
        a("s_nop 0")
        qk_pair()
        hook("B")
        if c == 3:
            a(f"s_waitcnt vmcnt({vm.need('Q2')})")
            for ds in range(4):
                a(qread(2, ds))
            scale_in(2, 0)
        hook("C")
        a(f"s_waitcnt vmcnt({vm.need('E0')})")
        a("s_barrier")
        for dt in range(8):
            for hb in range(2):
                a(vread(dt, hb, VA, 1))
        while nxt[0] < R - 1:
            more()
        assert o.xaux >= R - 3
        for k in range(o.xaux):
            a(f"s_mov_b32 m0, {s(sAM0)}")
            a("s_nop 0")
            a(aux_dma())
            a.extend(aux_adv())
        elem(R - 1, ring_adv())
        stamp((4,))
        stamp((5,), True)
        a(f"s_branch L_body{c}_2")

        a.label(f"L_pro{c}")
        valu = mask_valu() + [f"v_add_u32 {v(TA+4+dt)}, {s(sPH)}, {v(VA+dt)}" for dt in range(8)]
        valu += [f"v_mov_b32 {v(RL(u))}, 0" for u in range(c)]
        lg = Q(["R7", "W"])
        mem = [[oread(0, 0, 0), oread(1, 1, 0)], [oread(2, 2, 0), oread(3, 3, 0)]]
        tags = [["R0", "R1"], ["R2", "R3"]]
        if c == 3:
            mem += [[qread(2, 0), qread(2, 1)], [qread(2, 2), qread(2, 3)]]
            tags += [["Q", "Q"], ["Q", "Q"]]
        pend = [7, 0, 1, 2, 3]

        def one_store():
            rb = pend.pop(0)
            return [f"s_waitcnt lgkmcnt({lg.need(f'R{rb}')})", ostore(rb), ST_ADV]

        for z in range(2 * c):
            a(zero16(16 * z))
            room = 6
            if z in (2, 5):
                a.extend(one_store())
                room -= 3
            if z < len(mem):
                a.extend(mem[z])
                for tg in tags[z]:
                    lg.issue(tg)
                room -= 2
            a.extend(valu[:room])
            valu = valu[room:]
        a.extend(valu)
        if c == 3:
            a("s_waitcnt lgkmcnt(0)")
            sq = scale_q(2)
            a.extend(sq[:24])
            a.extend(one_store())
            a.extend(sq[24:48])
            a.extend(one_store())
            a.extend(sq[48:])
        a("s_waitcnt lgkmcnt(0)")
        a("s_barrier")
        vr = [vread(dt, hb, TA + 4, 0) for dt in range(8) for hb in range(2)]
        mid = [vr[2 * f:2 * f + 2] for f in range(8)]
        mid[0] = [ostore(pend.pop(0))] + mid[0]
        mid2 = {}
        if pend:
            mid[1] = [ST_ADV] + mid[1]
            mid[6] = [ostore(pend.pop(0))] + mid[6]
            mid[7] = [ST_ADV] + mid[7]
            mid2 = {4: [ostore(pend.pop(0))], 5: [ST_ADV]}
        qk_pair(mid, mid2)
        if pend:
            a(ostore(pend.pop(0)))
        assert not pend
        if o.stamp:
            a(f"s_add_u32 {s(sJIDX)}, {s(sJIDX)}, 1")
        stamp((4,))
        stamp((5,), True)
        for p in range(R - 1):
            a(f"s_cmp_eq_u32 {s(sPH)}, {p*8192}")
            a(f"s_cbranch_scc1 L_body{c}_{p+1}")
        for p in range(R):
            body(c, p)
        a.label(f"L_last{c}")
        stamp((6,))
        stamp((7,), True)
        slots = []
        shared = dict(g=[(x, None) for x in ring_dmas()],
                      q=[(qread(u, ds), "Q") for u in range(2) for ds in range(4)],
                      a=[(f"v_add_u32 {v(TA+ds)}, {s(sPH1)}, {v(KA+ds)}", None) for ds in range(4)],
                      n=[("s_nop 1", None)])
        if c == 3:
            slots += window(0, 2, MASK, first=True)
            lay = "- e g e c e g e c e g e gc e e c z".split()
            put(slots, 0, lay, dict(sm_items(1), z=[(ex(2, 0), None)], **shared))
            slots += window(1, None, MASK)
            lay2 = "e e e cc e e e e ccn".split()
            put(slots, 17, lay2, dict(sm_items(2, skip0=True), **shared))
            slots += window(2, None, MASK)
            lay3 = "qa qa qa qa q q q q -".split()
            put(slots, 26, lay3, shared)
            lay = lay + lay2 + lay3
        else:
            slots += window(0, None, MASK, first=True)
            lay = "e e e ec ec e e e ccn".split()
            put(slots, 0, lay, dict(sm_items(1), **shared))
            slots += window(1, None, MASK)
            lay2 = "qg qa qg qa qa qg qa qg -".split()
            put(slots, 9, lay2, shared)
            lay = lay + lay2
        place_waits(slots, vpend)
        pin_m0(slots, lay, None, f"s_add_u32 m0, {s(sT+4)}, {VR}", f"s_mov_b32 m0, {s(sT+4)}")
        q0 = min(i for i, l in enumerate(lay) if "q" in l)
        ng_ = sum(l.count("g") for l in lay[:q0 - 2])
        assert ng_ == sum(l.count("g") for l in lay[:q0])
        pin_before(slots, q0 - 3, q0 - 1, f"s_waitcnt vmcnt({min(9, 5*(R-3)) + ng_})")
        a(f"s_add_u32 {s(sT+4)}, {s(sPH2)}, {s(sWB)}")
        pre = [f"s_mov_b32 {s(sST)}, {s(sQROW)}", f"s_mov_b32 {s(SRO+2)}, {s(sONREC)}", f"s_mov_b64 {s(sACC,2)}, 0"]
        pre += take_next() + k_state(sD + 8, sNX, sNREC)
        nfix = len(pre)
        pre += q_setup(sD + 8, sNREC) + q_note(sD + 8)
        pre += [f"s_mov_b64 {s(sD+8,2)}, 0", f"s_mov_b64 {s(sD+10,2)}, 0"]
        left = place_salu(slots, 0, pre)
        assert len(pre) - len(left) >= 6
        out(slots)
        a(f"s_cmp_eq_u32 {s(sCPK)}, 0")
        a(f"s_cbranch_scc1 L_fin{c}")
        stamp((8,))
        adv = ring_adv()
        salu = left + adv[:3] + ["\n".join(adv[3:])]
        sq = scale_q(0) + scale_q(1)
        lg = Q(["Q"] * 8)
        kr = [kread(f, TA, 0) for f in range(8)]
        rbase = lambda uu: 4 * ((c - 1 - uu) & 1)
        groups = []
        for gi in range(8 * c):
            u, dt = gi // 8, gi % 8
            groups.append(dict(u=u, dt=dt, extra=[]))
        for f in range(8):
            groups[f]["extra"].append(("K", f))
        for u in range(1, c):
            for k in range(4):
                groups[8 * u + 2 * k]["extra"].append(("R", u - 1, k))
                g2 = 8 * u + 2 * k + 3
                if g2 < 8 * c:
                    groups[g2]["extra"].append(("S", u - 1, k))
        ng = len(groups)
        nsq = len(sq)
        for gi, g in enumerate(groups):
            u, dt = g["u"], g["dt"]
            buf = (c - 1 - u) & 1
            vl = (norm_head(u) if dt == 0 else []) + norm_pair(u, dt // 2)[4 * (dt % 2):4 * (dt % 2) + 4]
            take = (nsq * (gi + 1)) // ng - (nsq * gi) // ng
            qs = sq[:take]
            sq = sq[take:]
            if gi == 0:
                qs = ["s_waitcnt lgkmcnt(0)"] + qs
            gap = [ACC_OR] if dt == 0 else []
            mem2 = []
            gap2 = []
            for e in g["extra"]:
                if e[0] == "K":
                    mem2.append((kr.pop(0), "K"))
                elif e[0] == "R":
                    mem2.append((oread(rbase(e[1]) + e[2], e[2], buf ^ 1), f"R{rbase(e[1])+e[2]}"))
                else:
                    mem2.append((ostore(rbase(e[1]) + e[2]), f"R{rbase(e[1])+e[2]}"))

            def fill(gp):
                while salu and len(gp) < 2:
                    gp.append(salu.pop(0))

            def do_mem2(gp):
                for (txt, tag) in mem2:
                    if txt.startswith("buffer_store"):
                        gp.append(f"s_waitcnt lgkmcnt({lg.need(tag)})")
                        salu.insert(0, ST_ADV)
                return gp
            vl = vl + qs
            if len(vl) > o.gmax and mem2:
                h = max(len(vl) // 2, 7 if dt == 0 else 4)
                a.extend(vl[:h])
                fill(gap)
                a.extend(gap)
                a(owrite(u, dt, buf)); lg.issue("W")
                a.extend(vl[h:])
                adv_later = [x for x in mem2 if x[0].startswith("buffer_store")]
                if adv_later:
                    gap2.append(f"s_waitcnt lgkmcnt({lg.need(adv_later[0][1])})")
                fill(gap2)
                a.extend(gap2)
            else:
                a.extend(vl)
                adv_later = [x for x in mem2 if x[0].startswith("buffer_store")]
                if adv_later:
                    gap.append(f"s_waitcnt lgkmcnt({lg.need(adv_later[0][1])})")
                fill(gap)
                a.extend(gap)
                a(owrite(u, dt, buf)); lg.issue("W")
            for (txt, tag) in mem2:
                a(txt)
                if txt.startswith("ds_"):
                    lg.issue(tag)
            if adv_later:
                salu.insert(0, ST_ADV)
        a.extend(salu)
        assert not sq and not kr
        assert lg.need("R7") == 1
        a.extend(note_fail())
        a(f"s_lshl_b32 {s(sJBIT)}, {s(sJBIT)}, 1")
        stamp((9,))
        a(f"s_bitcmp1_b32 {s(sCPK)}, 28")
        a("s_cbranch_scc1 L_pro3")
        a("s_branch L_pro2")
        a.label(f"L_fin{c}")
        stamp((8,))
        a("s_waitcnt vmcnt(8)")
        lg = Q()
        for u in range(c):
            buf = (c - 1 - u) & 1
            for k in range(4):
                if k == 0:
                    a.extend(norm_head(u))
                a.extend(norm_pair(u, k))
                if k == 0:
                    a(ACC_OR)
                if u >= 1:
                    a(f"s_waitcnt lgkmcnt({lg.need(f'R{4*(u-1)+k}')})")
                    a(ostore(4 * (u - 1) + k))
                    a(ST_ADV)
                a(owrite(u, 2 * k, buf)); a(owrite(u, 2 * k + 1, buf))
                lg.issue("W", 2)
            for k in range(4):
                a(oread(4 * u + k, k, buf))
                lg.issue(f"R{4*u+k}")
        a.extend(note_fail())
        for k in range(4):
            a(f"s_waitcnt lgkmcnt({3-k})")
            a(ostore(4 * (c - 1) + k))
            a(ST_ADV)
        stamp((9,))
        if c != CS[-1]:
            a("s_branch L_done")

    a.label("L_done")
    if o.stamp:
        a("s_waitcnt vmcnt(0)")
        stamp(3)
        stamp(28, True)
        a(f"s_getreg_b32 {s(sTS)}, hwreg(HW_REG_HW_ID)")
        a(f"v_writelane_b32 {v(STAMP)}, {s(sTS)}, 29")
        a(f"s_getreg_b32 {s(sTS)}, hwreg(HW_REG_XCC_ID)")
        a(f"v_writelane_b32 {v(STAMP)}, {s(sTS)}, 30")
        a("s_load_dwordx2 s[96:97], s[0:1], 48")
        a("s_mov_b32 s98, 0x100000")
        a("s_mov_b32 s99, 0x20000")
        a(f"s_lshl_b32 {s(sT)}, s2, 2")
        a(f"s_add_u32 {s(sT)}, {s(sT)}, {s(sW)}")
        a(f"s_lshl_b32 {s(sT)}, {s(sT)}, {8 if o.steps else 7}")
        a(f"v_and_b32 v253, 63, {v(TID)}")
        a("v_lshlrev_b32 v253, 2, v253")
        a("s_waitcnt lgkmcnt(0)")
        if not o.steps:
            a("s_mov_b64 exec, 0xffffffff")
        a(f"buffer_store_dword {v(STAMP)}, v253, s[96:99], {s(sT)} offen")
        a("s_mov_b64 exec, -1")
    a(f"s_cmp_lg_u32 {s(sFAIL)}, 0")
    a("s_cbranch_scc1 L_slow")
    a.label("L_end")
    a("s_endpgm")

    SM, NI = RS(1), RS(1) + 1
    SV = RO(1)
    sU, sNT, sTI, sPASS = sL, sL + 1, sL + 2, sL + 3
    a.label("L_slow")
    a(f"s_getpc_b64 {s(sT,2)}")
    a.label("L_pc2")
    a(f"s_add_u32 {s(sT+2)}, {s(sTAB)}, L_table-L_pc2")
    a(f"s_load_dwordx16 {s(sD,16)}, {s(sT,2)}, {s(sT+2)}")
    a("s_waitcnt vmcnt(0) lgkmcnt(0)")
    a(f"s_sub_u32 {s(sT)}, {s(sPRIV)}, {VR-8192}")
    for k in range(12):
        a(f"v_add_u32 {v(TA+k)}, {s(sPRIV if k < 4 else sT)}, {v(KA+k)}")
    a(f"v_and_b32 {v(t[1])}, 15, {v(TID)}")
    a(f"v_bfe_u32 {v(t[3])}, {v(TID)}, 4, 2")
    for w in range(4):
        a(f"v_add_u32 {v(t[2])}, {4*w}, {v(t[3])}")
        a(f"v_xor_b32 {v(t[4])}, {v(t[2])}, {v(t[1])}")
        a(f"v_lshlrev_b32 {v(t[4])}, 4, {v(t[4])}")
        a(f"v_lshl_add_u32 {v(SV+2*w)}, {v(t[2])}, 12, {v(t[4])}")
        a(f"v_add_u32 {v(SV+2*w+1)}, 65536, {v(SV+2*w)}")
        a(f"v_and_b32 {v(t[4])}, 7, {v(t[2])}")
        a(f"v_lshlrev_b32 {v(t[4])}, 1, {v(t[4])}")
        a(f"v_xor_b32 {v(t[4])}, {v(t[4])}, {v(t[1])}")
        a(f"v_lshlrev_b32 {v(t[4])}, 4, {v(t[4])}")
        a(f"v_lshl_add_u32 {v(SV+8+2*w)}, {v(t[2])}, 12, {v(t[4])}")
        a(f"v_add_u32 {v(SV+8+2*w+1)}, 65536, {v(SV+8+2*w)}")
    QG = SV + 16
    a(f"v_lshlrev_b32 {v(QG)}, 4, {v(t[3])}")
    a(f"v_lshl_add_u32 {v(QG)}, {v(t[1])}, 12, {v(QG)}")
    a(f"v_mov_b32 {v(NI)}, 0xff800000")
    a.label("L_slow_job")
    a(f"s_bitcmp1_b32 {s(sFAIL)}, 0")
    a("s_cbranch_scc0 L_slow_next")
    a(f"s_and_b32 {s(sT)}, {s(sD+3)}, 0x1ffff")
    for srd in (SRQ, SRK, SRV, SRO):
        a(f"s_sub_u32 {s(srd+2)}, {s(sD+1)}, {s(sT)}")
    a(f"s_sub_u32 {s(sNT)}, {s(SRK+2)}, {s(sD)}")
    a(f"s_add_u32 {s(sNT)}, {s(sNT)}, 3840")
    a(f"s_lshr_b32 {s(sNT)}, {s(sNT)}, 12")
    a(f"s_lshr_b32 {s(sU)}, {s(sD+3)}, 28")
    a(f"s_mul_i32 {s(sT+2)}, {s(sU)}, {s(sW)}")
    a(f"s_lshl_b32 {s(sST)}, {s(sT+2)}, 16")
    a(f"s_add_u32 {s(sST)}, {s(sST)}, {s(sD+2)}")
    a.label("L_slow_sub")
    for ds in range(4):
        a(f"buffer_load_dwordx4 {v(RQ(0)+4*ds,4)}, {v(QG)}, {s(SRQ,4)}, {s(sST)} offen offset:{64*ds}")
    for r in range(32):
        a(f"v_mov_b32 {v(RO(0)+r)}, 0")
    a(f"v_mov_b32 {v(RL(0))}, 0")
    a(f"v_mov_b32 {v(SM)}, {v(NI)}")
    a("s_waitcnt vmcnt(0)")
    a.extend(scale_q(0))
    a(f"s_mov_b32 {s(sPASS)}, 0")
    a.label("L_slow_pass")
    a(f"s_mov_b32 {s(sTI)}, {s(sD)}")
    a(f"s_mov_b32 {s(sREM)}, {s(sNT)}")
    a.label("L_slow_tile")
    a(f"s_mov_b32 m0, {s(sPRIV)}")
    a("s_nop 0")
    for k in range(16):
        a(dma(SV + k, SRK if k < 8 else SRV, s(sTI), 0, ""))
        a("s_add_u32 m0, m0, 1024")
        a("s_nop 0")
    a("s_waitcnt vmcnt(0)")
    for f in range(8):
        a(kread(f, TA, 0))
    a("s_waitcnt lgkmcnt(0)")
    for dt in range(8):
        for hb in range(2):
            a(vread(dt, hb, TA + 4, 0))
        if dt == 3:
            a("s_waitcnt lgkmcnt(0)")
    for f in range(8):
        a(qk(0, f))
    a(f"v_sub_u32 {v(T)}, {s(sREM)}, {v(G4)}")
    a("s_nop 7")
    for r in range(8):
        a(f"v_cmp_lt_i32 vcc, {16*(r//4)+r%4}, {v(T)}")
        a("s_nop 1")
        a(f"v_cndmask_b32 {v(RS(0)+r)}, {v(NI)}, {v(RS(0)+r)}, vcc")
    a("s_waitcnt lgkmcnt(0)")
    a(f"s_cmp_eq_u32 {s(sPASS)}, 1")
    a("s_cbranch_scc1 L_slow_p2")
    for r in range(0, 8, 2):
        a(f"v_max3_f32 {v(SM)}, {v(SM)}, {v(RS(0)+r)}, {v(RS(0)+r+1)}")
    a("s_branch L_slow_adv")
    a.label("L_slow_p2")
    for r in range(8):
        a(f"v_sub_f32 {v(RS(0)+r)}, {v(RS(0)+r)}, {v(SM)}")
    for r in range(8):
        a(ex(0, r))
    a("s_nop 0")
    for k in range(4):
        a(cv(0, k))
    a("s_nop 1")
    for dt in range(8):
        a(pv(0, dt))
    a(rs(0, ONES))
    a.label("L_slow_adv")
    a(f"s_add_u32 {s(sTI)}, {s(sTI)}, {TILE}")
    a(f"s_sub_u32 {s(sREM)}, {s(sREM)}, 32")
    a(f"s_cmp_gt_i32 {s(sREM)}, 0")
    a("s_cbranch_scc1 L_slow_tile")
    a(f"s_cmp_eq_u32 {s(sPASS)}, 1")
    a("s_cbranch_scc1 L_slow_out")
    for sw in ("v_permlane32_swap_b32", "v_permlane16_swap_b32"):
        a(f"v_mov_b32 {v(T)}, {v(SM)}")
        a("s_nop 1")
        a(f"{sw} {v(SM)}, {v(T)}")
        a("s_nop 1")
        a(f"v_max_f32 {v(SM)}, {v(SM)}, {v(T)}")
    a(f"s_mov_b32 {s(sPASS)}, 1")
    a("s_branch L_slow_pass")
    a.label("L_slow_out")
    a("s_nop 7")
    a(f"v_rcp_f32 {v(INV)}, {v(RL(0))}")
    a("s_nop 0")
    for k in range(4):
        a.extend(norm_pair(0, k))
    for dt in range(8):
        a(owrite(0, dt, 0))
    for tt in range(4):
        a(oread(tt, tt, 0))
    a("s_waitcnt lgkmcnt(0)")
    for tt in range(4):
        a(ostore(tt))
        a(ST_ADV)
    a("s_waitcnt vmcnt(0)")
    a(f"s_sub_u32 {s(sU)}, {s(sU)}, 1")
    a(f"s_cmp_lg_u32 {s(sU)}, 0")
    a("s_cbranch_scc1 L_slow_sub")
    a.label("L_slow_next")
    for k in range(0, 4 * MAXJ - 4, 2):
        a(f"s_mov_b64 {s(sD+k,2)}, {s(sD+k+4,2)}")
    a(f"s_lshr_b32 {s(sFAIL)}, {s(sFAIL)}, 1")
    a(f"s_cmp_lg_u32 {s(sFAIL)}, 0")
    a("s_cbranch_scc1 L_slow_job")
    a("s_endpgm")

    bad = check_cfg(a.lines)
    for x in bad:
        print("HAZARD", x, file=sys.stderr)

    tab = table(plan)
    res = HEADER
    res += f"; @launch grid=({NWG},1,1) block=(256,1,1) lds=163840\n"
    res += f""".amdgcn_target "amdgcn-amd-amdhsa--gfx950"
.text
.globl {NAME}_kernel
.p2align 8
.type {NAME}_kernel,@function
{NAME}_kernel:
"""
    res += a.text()
    res += ".p2align 7\n.type L_table,@object\nL_table:\n"
    for x in tab:
        res += f".long 0x{x:08x}\n"
    res += f""".size L_table, {4*len(tab)}
.section .rodata,"a"
.p2align 6
.amdhsa_kernel {NAME}_kernel
  .amdhsa_next_free_vgpr 384
  .amdhsa_next_free_sgpr 102
  .amdhsa_accum_offset 256
  .amdhsa_group_segment_fixed_size 0
  .amdhsa_kernarg_size 56
  .amdhsa_user_sgpr_count 2
  .amdhsa_user_sgpr_kernarg_segment_ptr 1
  .amdhsa_system_sgpr_workgroup_id_x 1
.end_amdhsa_kernel
"""
    return res


if __name__ == "__main__":
    ap = argparse.ArgumentParser()
    ap.add_argument("-o", default="cdna_kernels/%s.s" % NAME)
    ap.add_argument("--plan", default="planB256.json")
    ap.add_argument("--nocheck", action="store_true")
    ap.add_argument("--ring", type=int, default=5)
    ap.add_argument("--ld", default="")
    ap.add_argument("--ldq", default="")
    ap.add_argument("--st", default="sc1")
    ap.add_argument("--stamp", action="store_true")
    ap.add_argument("--steps", action="store_true")
    ap.add_argument("--clk", action="store_true")
    ap.add_argument("--light", action="store_true")
    ap.add_argument("--drop", default="")
    ap.add_argument("--pf", action="store_true")
    ap.add_argument("--xaux", type=int, default=2)
    ap.add_argument("--gmax", type=int, default=10)
    ap.add_argument("--ramp", type=int, default=8)
    ap.add_argument("--pfo", default="AB")
    ap.add_argument("--wa2", default="dd e xdd e dc e gd e dc gd e e gc e e gc z")
    ap.add_argument("--w03", default="e e xc e - e gc e - e gc e e c g - -")
    ap.add_argument("--w13", default="dd e dd e dc e dd e dc e g e c e e c z")
    ap.add_argument("--wb", default="tt e tt e tc e tt tc e tt e tc e tt e tc tt")
    o = ap.parse_args()
    open(o.o, "w").write(gen(o))
```

```python
import sys, re
def add_spinner(asm, K, kind, fa, fb):
    NAME = "standalone__varlen_attn_packed__ragged"
    m = re.search(r"; @launch (grid=\S+ block=\S+ lds=\d+)", asm)
    asm = asm.replace(m.group(0), f"; @launch kernel={NAME}_kernel {m.group(1)}\n; @launch kernel=spin_kernel grid=(1,1,1) block=(64,1,1) lds=0")
    loads = "\n".join(f"    buffer_load_dword v{10+2*i}, v1, s[4:7], s{20+i} offen offset:{fa*4} sc1\n    buffer_load_dword v{11+2*i}, v1, s[4:7], s{20+i} offen offset:{fb*4} sc1" for i in range(16))
    offs = "\n".join(f"    s_mov_b32 s{20+i}, {i*8192}" for i in range(16))
    if kind == "span":
        red = "\n".join(f"    v_max_u32 v2, v2, v{10+2*i}\n    v_min_u32 v3, v3, v{11+2*i}" for i in range(16))
        init3, sop = "-1", "s_max_u32 s10, s10, s12\n    s_min_u32 s11, s11, s13"
        fin = f"s_sub_u32 s10, s10, s11\n    s_mul_i32 s10, s10, {K}"
    elif kind == "avg":
        red = "\n".join(f"    v_sub_u32 v4, v{10+2*i}, v{11+2*i}\n    v_add_u32 v2, v2, v4" for i in range(16))
        init3, sop = "0", "s_add_u32 s10, s10, s12"
        fin = f"s_mul_i32 s10, s10, {K}\n    s_lshr_b32 s10, s10, 10"
    elif kind == "maxd":
        red = "\n".join(f"    v_sub_u32 v4, v{10+2*i}, v{11+2*i}\n    v_max_u32 v2, v2, v4" for i in range(16))
        init3, sop = "0", "s_max_u32 s10, s10, s12"
        fin = f"s_mul_i32 s10, s10, {K}"
    body = f"""
.text
.p2align 8
.type spin_kernel,@function
spin_kernel:
    s_cmp_ge_u32 s2, 1
    s_cbranch_scc1 L_spin_end
    s_load_dwordx2 s[4:5], s[0:1], 48
    s_mov_b32 s6, 0x100000
    s_mov_b32 s7, 0x20000
    v_lshlrev_b32 v1, 7, v0
    v_mov_b32 v2, 0
    v_mov_b32 v3, {init3}
{offs}
    s_waitcnt lgkmcnt(0)
{loads}
    s_waitcnt vmcnt(0)
{red}
    s_mov_b32 s9, 0
    s_mov_b32 s10, 0
    s_mov_b32 s11, {init3}
L_spin_red:
    s_nop 4
    v_readlane_b32 s12, v2, s9
    v_readlane_b32 s13, v3, s9
    s_nop 4
    {sop}
    s_add_u32 s9, s9, 1
    s_cmp_lt_u32 s9, 64
    s_cbranch_scc1 L_spin_red
    {fin}
    s_min_u32 s10, s10, 200000
    s_memrealtime s[14:15]
    s_waitcnt lgkmcnt(0)
L_spin_wait:
    s_memrealtime s[16:17]
    s_waitcnt lgkmcnt(0)
    s_sub_u32 s18, s16, s14
    s_cmp_lt_u32 s18, s10
    s_cbranch_scc1 L_spin_wait
L_spin_end:
    s_endpgm
"""
    desc = """
.amdhsa_kernel spin_kernel
  .amdhsa_next_free_vgpr 64
  .amdhsa_next_free_sgpr 48
  .amdhsa_accum_offset 64
  .amdhsa_group_segment_fixed_size 0
  .amdhsa_kernarg_size 56
  .amdhsa_user_sgpr_count 2
  .amdhsa_user_sgpr_kernarg_segment_ptr 1
  .amdhsa_system_sgpr_workgroup_id_x 1
.end_amdhsa_kernel
"""
    asm = asm.replace('.section .rodata,"a"', body + '.section .rodata,"a"')
    return asm.rstrip() + "\n.p2align 6" + desc
if __name__ == "__main__":
    src, dst, K, kind, fa, fb = sys.argv[1:7]
    open(dst, "w").write(add_spinner(open(src).read(), int(K), kind, int(fa), int(fb)))
```

```python
import sys, re
def add_spinner(asm, K, kind, fa, fb):
    NAME = "standalone__varlen_attn_packed__ragged"
    m = re.search(r"; @launch (grid=\S+ block=\S+ lds=\d+)", asm)
    asm = asm.replace(m.group(0), f"; @launch kernel={NAME}_kernel {m.group(1)}\n; @launch kernel=spin_kernel grid=(1,1,1) block=(64,1,1) lds=0")
    loads = "\n".join(f"    buffer_load_dword v{10+2*i}, v1, s[4:7], s{20+i} offen offset:{fa*4} sc1\n    buffer_load_dword v{11+2*i}, v1, s[4:7], s{20+i} offen offset:{fb*4} sc1" for i in range(16))
    offs = "\n".join(f"    s_mov_b32 s{20+i}, {i*8192}" for i in range(16))
    if kind == "span":
        red = "\n".join(f"    v_max_u32 v2, v2, v{10+2*i}\n    v_min_u32 v3, v3, v{11+2*i}" for i in range(16))
        init3, sop = "-1", "s_max_u32 s10, s10, s12\n    s_min_u32 s11, s11, s13"
        fin = f"s_sub_u32 s10, s10, s11\n    s_mul_i32 s10, s10, {K}"
    elif kind == "avg":
        red = "\n".join(f"    v_sub_u32 v4, v{10+2*i}, v{11+2*i}\n    v_add_u32 v2, v2, v4" for i in range(16))
        init3, sop = "0", "s_add_u32 s10, s10, s12"
        fin = f"s_mul_i32 s10, s10, {K}\n    s_lshr_b32 s10, s10, 10"
    elif kind[0] == "x":
        xx = int(kind[1])
        red = "\n".join(f"    v_max_u32 v2, v2, v{10+2*i}\n    v_min_u32 v3, v3, v{11+2*i}" for i in range(16))
        red += f"\n    v_bfe_u32 v4, v0, 2, 3\n    v_cmp_eq_u32 vcc, {xx}, v4\n    s_nop 1\n    v_cndmask_b32 v2, 0, v2, vcc"
        init3, sop = "-1", "s_max_u32 s10, s10, s12\n    s_min_u32 s11, s11, s13"
        fin = f"s_sub_u32 s10, s10, s11\n    s_mul_i32 s10, s10, {K}"
    elif kind == "maxd":
        red = "\n".join(f"    v_sub_u32 v4, v{10+2*i}, v{11+2*i}\n    v_max_u32 v2, v2, v4" for i in range(16))
        init3, sop = "0", "s_max_u32 s10, s10, s12"
        fin = f"s_mul_i32 s10, s10, {K}"
    body = f"""
.text
.p2align 8
.type spin_kernel,@function
spin_kernel:
    s_cmp_ge_u32 s2, 1
    s_cbranch_scc1 L_spin_end
    s_load_dwordx2 s[4:5], s[0:1], 48
    s_mov_b32 s6, 0x100000
    s_mov_b32 s7, 0x20000
    v_lshlrev_b32 v1, 7, v0
    v_mov_b32 v2, 0
    v_mov_b32 v3, {init3}
{offs}
    s_waitcnt lgkmcnt(0)
{loads}
    s_waitcnt vmcnt(0)
{red}
    s_mov_b32 s9, 0
    s_mov_b32 s10, 0
    s_mov_b32 s11, {init3}
L_spin_red:
    s_nop 4
    v_readlane_b32 s12, v2, s9
    v_readlane_b32 s13, v3, s9
    s_nop 4
    {sop}
    s_add_u32 s9, s9, 1
    s_cmp_lt_u32 s9, 64
    s_cbranch_scc1 L_spin_red
    {fin}
    s_min_u32 s10, s10, 200000
    s_memrealtime s[14:15]
    s_waitcnt lgkmcnt(0)
L_spin_wait:
    s_memrealtime s[16:17]
    s_waitcnt lgkmcnt(0)
    s_sub_u32 s18, s16, s14
    s_cmp_lt_u32 s18, s10
    s_cbranch_scc1 L_spin_wait
L_spin_end:
    s_endpgm
"""
    desc = """
.amdhsa_kernel spin_kernel
  .amdhsa_next_free_vgpr 64
  .amdhsa_next_free_sgpr 48
  .amdhsa_accum_offset 64
  .amdhsa_group_segment_fixed_size 0
  .amdhsa_kernarg_size 56
  .amdhsa_user_sgpr_count 2
  .amdhsa_user_sgpr_kernarg_segment_ptr 1
  .amdhsa_system_sgpr_workgroup_id_x 1
.end_amdhsa_kernel
"""
    asm = asm.replace('.section .rodata,"a"', body + '.section .rodata,"a"')
    return asm.rstrip() + "\n.p2align 6" + desc
if __name__ == "__main__":
    src, dst, K, kind, fa, fb = sys.argv[1:7]
    open(dst, "w").write(add_spinner(open(src).read(), int(K), kind, int(fa), int(fb)))
```

```python
import sys, re
def add_spinner(asm, K, kind, fa, fb):
    NAME = "standalone__varlen_attn_packed__ragged"
    m = re.search(r"; @launch (grid=\S+ block=\S+ lds=\d+)", asm)
    asm = asm.replace(m.group(0), f"; @launch kernel={NAME}_kernel {m.group(1)}\n; @launch kernel=spin_kernel grid=(1,1,1) block=(64,1,1) lds=0")
    loads = "\n".join(f"    buffer_load_dword v{10+2*i}, v1, s[4:7], s{20+i} offen offset:{fa*4} sc1\n    buffer_load_dword v{11+2*i}, v1, s[4:7], s{20+i} offen offset:{fb*4} sc1" for i in range(16))
    offs = "\n".join(f"    s_mov_b32 s{20+i}, {i*8192}" for i in range(16))
    if kind == "span":
        red = "\n".join(f"    v_max_u32 v2, v2, v{10+2*i}\n    v_min_u32 v3, v3, v{11+2*i}" for i in range(16))
        init3, sop = "-1", "s_max_u32 s10, s10, s12\n    s_min_u32 s11, s11, s13"
        fin = f"s_sub_u32 s10, s10, s11\n    s_mul_i32 s10, s10, {K}"
    elif kind == "avg":
        red = "\n".join(f"    v_sub_u32 v4, v{10+2*i}, v{11+2*i}\n    v_add_u32 v2, v2, v4" for i in range(16))
        init3, sop = "0", "s_add_u32 s10, s10, s12"
        fin = f"s_mul_i32 s10, s10, {K}\n    s_lshr_b32 s10, s10, 10"
    elif kind[0] == "x":
        xx = int(kind[1])
        red = "\n".join(f"    v_max_u32 v2, v2, v{10+2*i}\n    v_min_u32 v3, v3, v{11+2*i}" for i in range(16))
        red += f"\n    v_bfe_u32 v4, v0, 2, 3\n    v_cmp_eq_u32 vcc, {xx}, v4\n    s_nop 1\n    v_cndmask_b32 v2, 0, v2, vcc"
        init3, sop = "-1", "s_max_u32 s10, s10, s12\n    s_min_u32 s11, s11, s13"
        fin = f"s_sub_u32 s10, s10, s11\n    s_mul_i32 s10, s10, {K}"
    elif kind[0] == "y":
        xx = int(kind[1])
        red = "    v_mov_b32 v2, -1\n" + "\n".join(f"    v_min_u32 v2, v2, v{10+2*i}\n    v_min_u32 v3, v3, v{11+2*i}" for i in range(16))
        red += f"\n    v_bfe_u32 v4, v0, 2, 3\n    v_cmp_eq_u32 vcc, {xx}, v4\n    v_not_b32 v2, v2\n    s_nop 1\n    v_cndmask_b32 v2, 0, v2, vcc"
        init3, sop = "-1", "s_max_u32 s10, s10, s12\n    s_min_u32 s11, s11, s13"
        fin = f"s_not_b32 s10, s10\n    s_sub_u32 s10, s10, s11\n    s_mul_i32 s10, s10, {K}"
    elif kind[0] == "z":
        xx = int(kind[1])
        red = "\n".join(f"    v_max_u32 v2, v2, v{10+2*i}" for i in range(16))
        red += f"\n    v_bfe_u32 v4, v0, 2, 3\n    v_cmp_eq_u32 vcc, {xx}, v4\n    s_nop 1\n    v_cndmask_b32 v3, 0, v2, vcc"
        init3, sop = "0", "s_max_u32 s10, s10, s12\n    s_max_u32 s11, s11, s13"
        fin = f"s_sub_u32 s10, s10, s11\n    s_mul_i32 s10, s10, {K}"
    elif kind == "maxd":
        red = "\n".join(f"    v_sub_u32 v4, v{10+2*i}, v{11+2*i}\n    v_max_u32 v2, v2, v4" for i in range(16))
        init3, sop = "0", "s_max_u32 s10, s10, s12"
        fin = f"s_mul_i32 s10, s10, {K}"
    body = f"""
.text
.p2align 8
.type spin_kernel,@function
spin_kernel:
    s_cmp_ge_u32 s2, 1
    s_cbranch_scc1 L_spin_end
    s_load_dwordx2 s[4:5], s[0:1], 48
    s_mov_b32 s6, 0x100000
    s_mov_b32 s7, 0x20000
    v_lshlrev_b32 v1, 7, v0
    v_mov_b32 v2, 0
    v_mov_b32 v3, {init3}
{offs}
    s_waitcnt lgkmcnt(0)
{loads}
    s_waitcnt vmcnt(0)
{red}
    s_mov_b32 s9, 0
    s_mov_b32 s10, 0
    s_mov_b32 s11, {init3}
L_spin_red:
    s_nop 4
    v_readlane_b32 s12, v2, s9
    v_readlane_b32 s13, v3, s9
    s_nop 4
    {sop}
    s_add_u32 s9, s9, 1
    s_cmp_lt_u32 s9, 64
    s_cbranch_scc1 L_spin_red
    {fin}
    s_min_u32 s10, s10, 200000
    s_memrealtime s[14:15]
    s_waitcnt lgkmcnt(0)
L_spin_wait:
    s_memrealtime s[16:17]
    s_waitcnt lgkmcnt(0)
    s_sub_u32 s18, s16, s14
    s_cmp_lt_u32 s18, s10
    s_cbranch_scc1 L_spin_wait
L_spin_end:
    s_endpgm
"""
    desc = """
.amdhsa_kernel spin_kernel
  .amdhsa_next_free_vgpr 64
  .amdhsa_next_free_sgpr 48
  .amdhsa_accum_offset 64
  .amdhsa_group_segment_fixed_size 0
  .amdhsa_kernarg_size 56
  .amdhsa_user_sgpr_count 2
  .amdhsa_user_sgpr_kernarg_segment_ptr 1
  .amdhsa_system_sgpr_workgroup_id_x 1
.end_amdhsa_kernel
"""
    asm = asm.replace('.section .rodata,"a"', body + '.section .rodata,"a"')
    return asm.rstrip() + "\n.p2align 6" + desc
if __name__ == "__main__":
    src, dst, K, kind, fa, fb = sys.argv[1:7]
    open(dst, "w").write(add_spinner(open(src).read(), int(K), kind, int(fa), int(fb)))
```
